```python
import torch

def _softmax(x, axis=-1):
    return torch.softmax(x, dim=axis)
def _gelu(x):
    return torch.nn.functional.gelu(x, approximate="tanh")
def _silu(x):
    return torch.nn.functional.silu(x)
def _sigmoid(x):
    return torch.sigmoid(x)
def _layernorm(x, axis=-1, eps=1e-5):
    m = x.mean(dim=axis, keepdim=True)
    v = x.var(dim=axis, keepdim=True, unbiased=False)
    return (x - m) / torch.sqrt(v + eps)
def _scatter_add(tgt, idx, src, axis=0):
    return tgt.clone().index_add_(axis, idx, src)
def _segment_sum(src, seg, n):
    out = torch.zeros((n,) + src.shape[1:], dtype=src.dtype)
    return out.index_add_(0, seg, src)
def _pad(x, pw):
    flat = tuple(v for pair in reversed(pw) for v in pair)
    return torch.nn.functional.pad(x, flat)

kernel_name = 'gated_mix__ssm_conv_s4__glu_gated_swiglu__prompt'

def setup_inputs():

    _w = (lambda a: (lambda t: t.to(torch.bfloat16) if t.is_floating_point() else t)(torch.as_tensor(a)))
    def _A_setup():
        B, L, D, N = 1, 2048, 576, 128
        A_re = -(lambda _x: torch.exp(torch.as_tensor(_x)))((lambda *s: torch.randn(*s, dtype=torch.bfloat16) * 3.2)(D, N))
        A_im = torch.pi * (lambda *s: torch.randn(*s, dtype=torch.bfloat16) * 0.05)(D, N)
        B_re = (lambda *s: torch.randn(*s, dtype=torch.bfloat16) * 0.1)(D, N)
        B_im = (lambda *s: torch.randn(*s, dtype=torch.bfloat16) * 0.1)(D, N)
        C_re = (lambda *s: torch.randn(*s, dtype=torch.bfloat16) * 0.1)(D, N)
        C_im = (lambda *s: torch.randn(*s, dtype=torch.bfloat16) * 0.1)(D, N)
        log_dt = (lambda *s: torch.randn(*s, dtype=torch.bfloat16) * 0.05)(D) * 0.5 - 4.0
        Dskip = (lambda *s: torch.randn(*s, dtype=torch.bfloat16) * 0.05)(D)
        return {
            "u": _w((lambda *s: torch.randn(*s, dtype=torch.bfloat16) * 0.05)(B, L, D)),
            "A_re": _w(A_re),
            "A_im": _w(A_im),
            "B_re": _w(B_re),
            "B_im": _w(B_im),
            "C_re": _w(C_re),
            "C_im": _w(C_im),
            "log_dt": _w(log_dt),
            "Dskip": _w(Dskip),
        }
    _A_in = _A_setup()

    def _B_setup():
        B, S, D, F = 1, 2048, 576, 4608
        return {
            "x": _w((lambda *s: torch.randn(*s, dtype=torch.bfloat16) * 0.05)(B, S, D)),
            "w1": _w((lambda *s: torch.randn(*s, dtype=torch.bfloat16) * 0.8)(D, F) * (2.0 / D) ** 0.5),
            "w3": _w((lambda *s: torch.randn(*s, dtype=torch.bfloat16) * 0.8)(D, F) * (2.0 / D) ** 0.5),
            "w2": _w((lambda *s: torch.randn(*s, dtype=torch.bfloat16) * 0.8)(F, D) * (2.0 / F) ** 0.5),
        }
    _B_in = _B_setup()

    return {
        "A_u": _A_in["u"],
        "A_A_re": _A_in["A_re"],
        "A_A_im": _A_in["A_im"],
        "A_B_re": _A_in["B_re"],
        "A_B_im": _A_in["B_im"],
        "A_C_re": _A_in["C_re"],
        "A_C_im": _A_in["C_im"],
        "A_log_dt": _A_in["log_dt"],
        "A_Dskip": _A_in["Dskip"],
        "B_x": _B_in["x"],
        "B_w1": _B_in["w1"],
        "B_w3": _B_in["w3"],
        "B_w2": _B_in["w2"],
        "gate_w": _w((lambda *s: torch.randn(*s, dtype=torch.bfloat16) * 0.05)(576) * 16.0),
    }

def reference(A_u, A_A_re, A_A_im, A_B_re, A_B_im, A_C_re, A_C_im, A_log_dt, A_Dskip, B_x, B_w1, B_w3, B_w2, gate_w):
    def _A_ref(u, A_re, A_im, B_re, B_im, C_re, C_im, log_dt, Dskip):
        Bsz, L, D = u.shape
        dt = torch.exp(log_dt)[:, None]
        A = A_re + 1j * A_im
        Bc = B_re + 1j * B_im
        Cc = C_re + 1j * C_im
        logdA = dt * A
        dB = dt * Bc
        l = (lambda x, dt: x.to(dt))(torch.arange(L), A_re.dtype)
        P = torch.exp(logdA[:, :, None] * l[None, None, :])
        K = torch.einsum("dn,dnl,dn->dl", Cc, P, dB).real
        L2 = 2 * L
        Kp = _pad(K, ((0, 0), (0, L)))
        up = (lambda x, *d: x.permute(*d))(u, 0, 2, 1)
        up = _pad(up, ((0, 0), (0, 0), (0, L)))
        Kf = (lambda x, axes=(-2,-1): torch.fft.rfft2(x.float(), dim=axes))(Kp[:, None, :], axes=(-2, -1))
        Uf = (lambda x, axes=(-2,-1): torch.fft.rfft2(x.float(), dim=axes))(up[:, :, None, :], axes=(-2, -1))
        Yf = Uf * Kf[None, :, :, :]
        y = (lambda x, s, axes=(-2,-1): torch.fft.irfft2(x, s=s, dim=axes).to(torch.bfloat16))(Yf, (1, L2), axes=(-2, -1))[:, :, 0, :L]
        y = (lambda x, *d: x.permute(*d))(y, 0, 2, 1) + u * Dskip[None, None, :]
        return y

    def _B_ref(x, w1, w3, w2):
        gate = torch.einsum("bsd,df->bsf", x, w1)
        up = torch.einsum("bsd,df->bsf", x, w3)
        h = _silu(gate) * up
        out = torch.einsum("bsf,fd->bsd", h, w2)
        return out

    x = A_u
    g = _sigmoid((x * gate_w).sum(-1, keepdims=True))
    a = _A_ref(x, A_A_re, A_A_im, A_B_re, A_B_im, A_C_re, A_C_im, A_log_dt, A_Dskip)
    b = _B_ref(x, B_w1, B_w3, B_w2)
    return g * a + (1 - g) * b
```

```python
import re

TRANS = ("v_exp_f32", "v_log_f32", "v_rcp_f32", "v_rsq_f32", "v_sqrt_f32", "v_sin_f32", "v_cos_f32")

def parse_reg(tok):
    tok = tok.strip()
    m = re.fullmatch(r"([vas])(\d+)", tok)
    if m:
        return {(m.group(1), int(m.group(2)))}
    m = re.fullmatch(r"([vas])\[(\d+):(\d+)\]", tok)
    if m:
        return {(m.group(1), i) for i in range(int(m.group(2)), int(m.group(3)) + 1)}
    if tok == "vcc":
        return {("s", 106), ("s", 107)}
    if tok == "vcc_lo": return {("s", 106)}
    if tok == "vcc_hi": return {("s", 107)}
    if tok == "m0":
        return {("s", 124)}
    if tok == "exec": return {("s", 126), ("s", 127)}
    if tok == "exec_lo": return {("s", 126)}
    if tok == "exec_hi": return {("s", 127)}
    return set()

class I:
    __slots__ = ("txt", "op", "kind", "dst", "src", "tag", "cost", "passes", "srcc", "wide", "isdma", "ab")
    def __init__(self, txt, tag=None, cost=None):
        self.txt = txt.strip()
        self.tag = tag
        sp = self.txt.split(None, 1)
        self.op = op = sp[0]
        rest = sp[1] if len(sp) > 1 else ""
        ops = [o.strip() for o in rest.split(",")] if rest else []
        mods = ""
        if ops:
            l = ops[-1].split(None, 1)
            ops[-1] = l[0]
            mods = l[1] if len(l) > 1 else ""
        R = [parse_reg(o) for o in ops]
        U = lambda xs: set().union(*xs) if xs else set()
        self.passes = 0; self.srcc = set(); self.wide = False; self.isdma = False; self.ab = set()
        self.cost = 1
        if op.endswith(":"):
            self.kind = "label"; self.dst = set(); self.src = set(); self.cost = 0
        elif op.startswith("v_mfma"):
            self.kind = "mfma"; self.dst = R[0]; self.src = U(R[1:]); self.srcc = R[3]; self.ab = R[1] | R[2]
            self.passes = 8 if "32x32" in op else 4
        elif op.startswith("v_"):
            self.kind = "valu"
            if op in TRANS: self.kind = "trans"; self.cost = 2
            if op.startswith("v_dot"): self.kind = "dot"
            if op.startswith("v_permlane"):
                self.dst = R[0] | R[1]; self.src = R[0] | R[1]
            else:
                self.dst = R[0]; self.src = U(R[1:])
                if op.startswith("v_cndmask") and len(ops) == 3: self.src |= parse_reg("vcc")
                if op.startswith("v_dot2c") or op.startswith("v_fmac") or op.startswith("v_pk_fmac"): self.src |= R[0]
                if op.startswith("v_dot"): self.srcc = R[3] if len(R) > 3 else R[0]; self.ab = R[1] | R[2]
        elif op.startswith("ds_"):
            self.kind = "lds"
            if "read" in op: self.dst = R[0]; self.src = U(R[1:])
            else: self.dst = set(); self.src = U(R)
        elif op.startswith("buffer_") or op.startswith("global_"):
            self.kind = "vmem"
            islds = re.search(r"\blds\b", mods) is not None
            if "load" in op and not islds: self.dst = R[0]; self.src = U(R[1:])
            elif islds: self.dst = set(); self.src = U(R) | parse_reg("m0"); self.isdma = True
            else:
                self.dst = set(); self.src = U(R)
                if "x4" in op or "x3" in op: self.wide = True; self.ab = R[0] if op.startswith("buffer") else R[1]
        elif op.startswith("s_load") or op in ("s_memtime", "s_memrealtime"):
            self.kind = "smem"; self.dst = R[0]; self.src = U(R[1:])
        elif op.startswith("s_"):
            self.kind = "salu"
            if op.startswith(("s_cmp", "s_waitcnt", "s_barrier", "s_cbranch", "s_branch", "s_nop", "s_endpgm", "s_setprio", "s_sleep", "s_bitcmp")):
                self.dst = set(); self.src = U(R)
            else:
                self.dst = R[0]; self.src = U(R[1:])
                if "saveexec" in op: self.dst = self.dst | parse_reg("exec")
        elif op.startswith(";") or op.startswith("."):
            self.kind = "label"; self.dst = set(); self.src = set(); self.cost = 0
        else:
            raise ValueError(txt)
        if cost is not None: self.cost = cost
    def __repr__(self): return self.txt

class W:
    __slots__ = ("vm", "lg", "cost", "kind")
    def __init__(self, vm=None, lg=None):
        f = lambda x: [] if x is None else (list(x) if isinstance(x, (list, tuple, set)) else [x])
        self.vm = f(vm); self.lg = f(lg); self.cost = 1; self.kind = "wait"

class Ctl:
    def __init__(self, what, arg=None):
        self.what = what; self.arg = arg; self.cost = 0; self.kind = "ctl"

def resolve_waits(items):
    out = []
    vm = []
    lg = []
    vmdone = 0; lgdone = 0
    vmpos = {}; lgpos = {}
    smem_out = False
    saved = {}
    for it in items:
        if isinstance(it, Ctl):
            if it.what == "raw":
                out.extend(it.arg)
            continue
        if isinstance(it, W):
            parts = []
            if it.vm:
                last = max(vmpos[t] for t in it.vm)
                if last >= vmdone:
                    n = len(vm) - 1 - last
                    if n > 63: raise ValueError("vmcnt %d too large for %s" % (n, it.vm))
                    parts.append("vmcnt(%d)" % n); vmdone = last + 1
            if it.lg:
                last = max(lgpos[t] for t in it.lg)
                if last >= lgdone:
                    n = len(lg) - 1 - last
                    if smem_out: n = 0
                    n = min(n, 15) if n <= 15 else 15
                    parts.append("lgkmcnt(%d)" % n); lgdone = len(lg) - n
                    if n == 0: smem_out = False
            if parts: out.append(I("s_waitcnt " + " ".join(parts)))
            continue
        if it.kind == "vmem":
            if it.tag is not None: vmpos[it.tag] = len(vm)
            vm.append(it.tag)
        elif it.kind == "lds" or it.kind == "smem":
            if it.tag is not None: lgpos[it.tag] = len(lg)
            lg.append(it.tag)
            if it.kind == "smem": smem_out = True
        elif it.op == "s_waitcnt":
            m = re.search(r"vmcnt\((\d+)\)", it.txt)
            if m: vmdone = max(vmdone, len(vm) - int(m.group(1)))
            m = re.search(r"lgkmcnt\((\d+)\)", it.txt)
            if m:
                n = int(m.group(1))
                if n == 0: smem_out = False
                if not smem_out: lgdone = max(lgdone, len(lg) - n)
        out.append(it)
    return out

def isvalu(k): return k in ("valu", "trans", "dot")

def need_states(p, c):
    n = 0
    vg = lambda s: {r for r in s if r[0] in "va"}
    sg = lambda s: {r for r in s if r[0] == "s"}
    if isvalu(p.kind):
        pv = vg(p.dst); ps = sg(p.dst)
        if pv:
            if c.kind == "mfma" and pv & c.src: n = max(n, 2)
            if isvalu(c.kind):
                if c.op.startswith("v_permlane") and pv & c.src: n = max(n, 2)
                if c.op.startswith(("v_readfirstlane", "v_readlane")) and pv & c.src: n = max(n, 1)
                if "dpp" in c.txt or "row_" in c.txt or "quad_perm" in c.txt:
                    if pv & c.src: n = max(n, 2)
                if p.kind == "trans" and c.kind != "trans" and pv & c.src: n = max(n, 1)
                if p.kind == "dot":
                    if c.op == p.op:
                        if pv & c.ab: n = max(n, 3)
                    elif pv & (c.src | c.dst): n = max(n, 3)
            if p.kind == "dot" and c.kind in ("vmem", "lds", "mfma") and pv & c.src: n = max(n, 3)
            if p.kind == "trans" and c.kind in ("vmem", "lds") and pv & c.src: n = max(n, 1)
        if ps:
            if c.kind == "vmem" and ps & c.src: n = max(n, 5)
            if isvalu(c.kind) and ps & c.src: n = max(n, 2)
            if c.kind == "salu" and ps & c.src: n = max(n, 1)
    elif p.kind == "mfma":
        big = 12 if p.passes == 8 else 8
        if c.kind == "mfma":
            if p.dst & c.ab: n = max(n, big)
            if p.dst & c.srcc and not (p.dst == c.srcc and p.passes == c.passes): n = max(n, big - 2)
            if p.dst & c.dst and not (p.dst == c.srcc and p.passes == c.passes): n = max(n, big - 2)
        elif isvalu(c.kind):
            if p.dst & (c.src | c.dst): n = max(n, big)
            if p.srcc & c.dst: n = max(n, 7 if p.passes == 8 else 3)
        elif c.kind in ("vmem", "lds"):
            if p.dst & (c.src | c.dst): n = max(n, big)
    elif p.kind == "salu":
        if ("s", 124) in p.dst and c.isdma: n = max(n, 1)
        if (("s", 126) in p.dst or ("s", 127) in p.dst) and isvalu(c.kind) and c.op.startswith(("v_permlane", "v_readlane", "v_readfirstlane")): n = max(n, 2)
    elif p.kind == "vmem" and p.wide:
        if p.ab & c.dst: n = max(n, 2 if isvalu(c.kind) else 1)
    return n

def pad_hazards(items, verbose=False):
    out = []
    hist = []
    pos = 0
    nn = 0
    for it in items:
        if it.kind == "label":
            out.append(it); continue
        req = 0; why = None
        for p, pp in hist[-14:]:
            n = need_states(p, it)
            if n and (pos - pp - 1) < n:
                if n - (pos - pp - 1) > req: req = n - (pos - pp - 1); why = p
        if req:
            if verbose: print("nop %d: [%s] -> [%s]" % (req, why.txt, it.txt))
            out.append(I("s_nop %d" % (req - 1))); pos += req; nn += 1
        out.append(it)
        if it.op == "s_nop":
            pos += int(it.txt.split()[1]) + 1
        else:
            hist.append((it, pos)); pos += 1
    return out, nn

def render(items):
    L = []
    for it in items:
        L.append(it.txt if it.kind == "label" and it.txt.endswith(":") else "    " + it.txt)
    return "\n".join(L) + "\n"

class P:
    def __init__(self): self.items = []
    def __call__(self, txt, tag=None, cost=None):
        for ln in txt.split("\n"):
            if ln.strip(): self.items.append(I(ln, tag, cost))
    def w(self, vm=None, lg=None): self.items.append(W(vm, lg))
    def ext(self, x): self.items.extend(x.items if isinstance(x, P) else x)
    def label(self, n): self.items.append(I(n + ":"))

class Sched:
    def __init__(self, n):
        self.n = n; self.m = [None] * n
        self.gap = [[] for _ in range(n)]; self.pre = [[] for _ in range(n)]; self.cost = [0] * n
    def at(self, g, it, front=False):
        its = it if isinstance(it, list) else [it]
        if front: self.gap[g] = its + self.gap[g]
        else: self.gap[g] += its
        self.cost[g] += sum(i.cost for i in its)
    def before(self, g, it):
        self.pre[g].append(it)
        if g > 0: self.cost[g - 1] += it.cost
    def spread(self, units, lo, hi, look=2):
        n = len(units); last = lo
        tot = float(sum(sum(i.cost for i in u) for u in units)); acc = 0.0
        for u in units:
            c = sum(i.cost for i in u)
            ideal = lo + int((acc + c / 2.0) / tot * (hi - lo + 1)); ideal = min(max(ideal, lo), hi)
            cand = list(range(max(last, ideal - look), min(hi, max(last, ideal + look)) + 1))
            g = min(cand, key=lambda g: (self.cost[g], abs(g - ideal)))
            self.at(g, u); last = g; acc += c
        return last
    def items(self):
        out = []
        for g in range(self.n):
            out += self.pre[g]; out.append(self.m[g]); out += self.gap[g]
        return out
```

```python
import sys, struct
sys.path.insert(0, "work")
from fw import *
from asmlib import build_file, assemble

KN = "gated_mix__ssm_conv_s4__glu_gated_swiglu__prompt_kernel"
HBUF = 0; PART = 0x1400000; YB = 0x2800000; FL = 0x2C00000
FL1 = FL; FL1B = FL + 0x10000; FL2 = FL + 0x20000; FLY = FL + 0x30000; STAMP = FL + 0x40000; WSSIZE = 0x2D00000
OOB = 0x40000000
SPIN = 20000
def f2u(x): return struct.unpack("<I", struct.pack("<f", x))[0]
LOG2E = 1.4426950408889634
def V(i, n=1): return "v%d" % i if n == 1 else "v[%d:%d]" % (i, i + n - 1)
def A(i, n=1): return "a%d" % i if n == 1 else "a[%d:%d]" % (i, i + n - 1)

SX, SW1, SW3, SW2, SOUT, SWS, SDBG = "s[4:7]", "s[8:11]", "s[12:15]", "s[16:19]", "s[20:23]", "s[24:27]", "s[28:31]"
SK = {0: "0", 1: "s72", 2: "s73", 3: "s79", 4: "s82"}
SLOT1 = 24576
def slot1(j): return ((j + 3) % 5) * SLOT1
SLOT2 = [122880, 0, 36864, 73728]
KBUF = 49152; KPITCH = 4864; UBUF = 124032; UCH = 8320; UCOPY = 4160
FPITCH = 544; FWAVE = 57 * FPITCH
NONCE = 34

class G:
    def __init__(self, stamps=False, opts=None):
        self.stamps = stamps; self.nst = 0; self.slow = []; self.o = opts or {}
    def stamp(self, grp="m", wait=None):
        if not self.stamps or grp not in self.o.get("grp", "m0"): return []
        k = self.nst; self.nst += 1
        assert k < 8
        return [I("%s s[%d:%d]" % ("s_memtime" if self.o.get("cyc") else "s_memrealtime", 84 + 2 * k, 85 + 2 * k))]

    def setup(self):
        p = P()
        p("s_cmp_ge_u32 s2, 256\ns_cbranch_scc1 END")
        p("s_load_dwordx16 s[32:47], s[0:1], 8")
        for d, off in ((4, 0), (8, 80), (12, 88), (16, 96), (48, 104), (20, 112), (28, 120), (24, 128)):
            p("s_load_dwordx2 s[%d:%d], s[0:1], %d" % (d, d + 1, off))
        p.ext(self.stamp("0"))
        p("v_and_b32 v1, 63, v0\nv_lshrrev_b32 v39, 6, v0")
        p("s_and_b32 s51, s2, 7\ns_lshr_b32 s52, s2, 3\ns_and_b32 s53, s52, 1\ns_lshr_b32 s54, s52, 1")
        p("v_readfirstlane_b32 s50, v39")
        for d, n in ((4, 2359296), (8, 5308416), (12, 5308416), (16, 5308416), (20, 2359296), (24, WSSIZE), (28, 256)):
            p("s_mov_b32 s%d, 0x%x\ns_mov_b32 s%d, 0x20000" % (d + 2, n, d + 3))
        p("s_mov_b32 s68, 0x%x\ns_mov_b32 s69, 0x%x\ns_mov_b32 s70, 1.0\ns_mov_b32 s71, 1.0" % (f2u(-LOG2E), f2u(-LOG2E)))
        p("s_movk_i32 s72, 4096\ns_movk_i32 s73, 8192\ns_movk_i32 s79, 12288\ns_movk_i32 s82, 16384")
        p("s_or_b32 s55, s2, s50\ns_cmp_lg_u32 s55, 0\ns_cbranch_scc1 NONONCE")
        p("s_memrealtime s[80:81]\ns_waitcnt lgkmcnt(0)\ns_or_b32 s80, s80, 1\nv_mov_b32 v34, s80")
        p("buffer_store_dword v34, off, %s, 0 sc1" % SDBG)
        p.label("NONONCE")
        if self.o.get("cpf"):
            p("s_getpc_b64 s[80:81]\ns_lshl_b32 s55, s52, 2\ns_add_u32 s55, s55, s50\ns_mul_i32 s55, s55, 5")
            p("v_add_u32 v44, s55, v1\nv_min_u32 v44, %d, v44\nv_lshlrev_b32 v44, 7, v44\ns_mov_b64 exec, 31" % self.o["cpf"])
            p("global_load_dword v44, v44, s[80:81]\ns_mov_b64 exec, -1")
        p("s_waitcnt lgkmcnt(0)")
        return p

    def conv_loads(self):
        p = P()
        p("s_mul_i32 s58, s51, 18\ns_add_u32 s58, s58, s52\ns_lshl_b32 s59, s58, 2\ns_add_u32 s59, s59, s50")
        p("s_cmp_ge_u32 s2, 144\ns_cbranch_scc1 NOCONVLD")
        p("s_lshl_b32 s55, s59, 8\nv_lshl_add_u32 v39, v1, 2, s55")
        for k in range(6):
            p("global_load_dword v%d, v39, s[%d:%d]" % (48 + k, 32 + 2 * k, 33 + 2 * k), tag="par")
        p("s_lshl_b32 s55, s59, 1\nv_mov_b32 v55, s55")
        p("global_load_ushort v54, v55, s[44:45]", tag="par")
        p("s_movk_i32 s55, 9216\ns_lshl_b32 s56, s58, 3\nv_mul_lo_u32 v39, v0, s55\nv_add_u32 v39, s56, v39")
        p("v_subrev_u32 v74, 1152, v39\nv_add_u32 v75, 4608, v39")
        p("buffer_load_dwordx2 v[56:57], v74, %s, 0 offen" % SX, tag="u")
        for i in range(8):
            p("buffer_load_dwordx2 v[%d:%d], v%d, %s, 0 offen offset:%d" % (58 + 2 * i, 59 + 2 * i, 39 if i < 4 else 75, SX, 1152 * (i & 3)), tag="u")
        p.label("NOCONVLD")
        return p

    def common_loads(self):
        p = P()
        p("s_lshl_b32 s55, s54, 7\ns_lshl_b32 s56, s50, 5\ns_add_u32 s55, s55, s56\ns_movk_i32 s57, 1152")
        p("v_and_b32 v2, 31, v1\nv_add_u32 v2, s55, v2\nv_mul_lo_u32 v2, v2, s57\nv_lshrrev_b32 v3, 5, v1\nv_lshl_add_u32 v2, v3, 4, v2")
        for ks in range(36):
            p("buffer_load_dwordx4 %s, v2, %s, 0 offen offset:%d" % (A(4 * ks, 4), SX, 32 * ks), tag="x%d" % ks)
        p("v_mul_u32_u24 v3, 57, v0\nv_lshrrev_b32 v3, 9, v3\nv_mul_u32_u24 v4, 9, v3\nv_sub_u32 v4, v0, v4\nv_lshlrev_b32 v4, 7, v4")
        p("s_mul_i32 s55, s52, 18\nv_add_u32 v3, s55, v3")
        p("s_movk_i32 s56, 9216\nv_mul_lo_u32 v5, v3, s56\ns_mul_i32 s56, s51, 1152\nv_add3_u32 v5, v5, v4, s56")
        p("s_mul_i32 s56, s51, 576\nv_add_u32 v3, s56, v3\nv_mad_u32_u24 v3, v3, s57, v4")
        p("v_cmp_gt_u32 vcc, 162, v0\nv_mov_b32 v4, 0x%x" % OOB)
        p("v_cndmask_b32 v5, v4, v5, vcc\nv_cndmask_b32 v3, v4, v3, vcc")
        p("buffer_load_dword v45, v5, %s, 0 offen" % SW1, tag="pf")
        p("buffer_load_dword v46, v5, %s, 0 offen" % SW3, tag="pf")
        p("buffer_load_dword v47, v3, %s, 0 offen" % SW2, tag="pf")
        return p

    def addr_setup(self):
        p = P()
        p("s_mul_i32 s55, s51, 1152\ns_mul_i32 s56, s53, 640\ns_add_u32 s56, s56, s55")
        p("s_lshl_b32 s57, s53, 6\ns_add_u32 s57, s57, s55\ns_add_u32 s57, s57, 512")
        p("s_mul_i32 s61, s50, 3072\ns_lshl_b32 s65, s50, 13\ns_lshl_b32 s66, s50, 10\ns_add_u32 s66, s66, 32768")
        p("s_movk_i32 s60, 9216")
        p("s_mul_i32 s55, s50, 24\nv_lshrrev_b32 v82, 3, v1\nv_add_u32 v83, s55, v82\nv_mul_lo_u32 v83, v83, s60")
        p("v_and_b32 v84, 7, v1\nv_bfe_u32 v85, v1, 4, 1\nv_lshlrev_b32 v86, 1, v85\nv_xor_b32 v86, v84, v86")
        p("v_lshl_add_u32 v2, v86, 4, v83\nv_xor_b32 v86, 4, v86\nv_lshl_add_u32 v5, v86, 4, v83")
        for m in range(2):
            for i in (1, 2): p("v_add_u32 v%d, 0x%x, v%d" % (2 + 3 * m + i, i * (8 * 9216 - 1024), 2 + 3 * m))
        p("s_mul_i32 s55, s50, 48\nv_lshrrev_b32 v83, 2, v1\nv_add_u32 v87, s55, v83\nv_mul_lo_u32 v87, v87, s60")
        p("v_and_b32 v88, 3, v1\nv_lshl_add_u32 v76, v88, 4, v87\nv_xor_b32 v86, 2, v88\nv_lshl_add_u32 v79, v86, 4, v87")
        for m in range(2):
            for i in (1, 2): p("v_add_u32 v%d, 0x%x, v%d" % (76 + 3 * m + i, i * (16 * 9216 - 1024), 76 + 3 * m))
        p("v_lshrrev_b32 v89, 5, v1\nv_and_b32 v90, 3, v83\nv_lshrrev_b32 v91, 1, v90")
        p("v_lshl_add_u32 v92, v89, 3, v90")
        p("v_mul_u32_u24 v93, 12288, v85\nv_lshl_add_u32 v93, v88, 3, v93")
        p("v_lshl_add_u32 v94, v92, 7, v93\nv_lshl_add_u32 v95, v85, 1, v91")
        for q in range(4):
            p("v_xor_b32 v96, %d, v95\nv_lshl_add_u32 v%d, v96, 5, v94\nv_add_u32 v%d, 0x%x, v%d" % (q, 8 + q, 12 + q, 3 * SLOT1, 8 + q))
        p("v_lshl_add_u32 v94, v92, 6, v93")
        for q in range(2):
            p("v_xor_b32 v96, %d, v85\nv_lshl_add_u32 v%d, v96, 5, v94\nv_add_u32 v%d, 0x%x, v%d" % (q, 16 + q, 18 + q, 3 * SLOT1, 16 + q))
        p("v_lshl_add_u32 v92, v89, 2, v90\nv_lshlrev_b32 v93, 3, v88\nv_lshl_add_u32 v93, v85, 5, v93")
        p("v_lshl_add_u32 v94, v92, 7, v93\nv_lshl_add_u32 v28, v91, 6, v94\nv_xor_b32 v29, 64, v28")
        p("v_lshl_add_u32 v30, v92, 6, v93\nv_add_u32 v30, 0x8000, v30")
        for k in range(3): p("v_add_u32 v%d, 0x%x, v%d" % (25 + k, SLOT2[0], 28 + k))
        p("s_movk_i32 s60, 1152\ns_mul_i32 s55, s53, 640\ns_lshl_b32 s62, s50, 7\ns_add_u32 s55, s55, s62")
        p("v_lshlrev_b32 v86, 2, v85\nv_xor_b32 v86, v84, v86\nv_lshlrev_b32 v86, 4, v86\nv_mad_u32_u24 v86, v82, s60, v86\nv_add_u32 v20, s55, v86")
        for i in (1, 2, 3): p("v_add_u32 v%d, 0x%x, v20" % (20 + i, i * (9216 - 1024)))
        p("s_lshl_b32 s55, s50, 4\nv_add_u32 v86, s55, v83\nv_lshlrev_b32 v87, 4, v88\nv_mad_u32_u24 v86, v86, s60, v87")
        p("s_lshl_b32 s55, s53, 6\ns_add_u32 s55, s55, 512\nv_add_u32 v24, s55, v86")
        p("s_mul_i32 s55, s51, 663552\ns_mul_i32 s62, s53, 368640\ns_add_u32 s74, s55, s62\ns_sub_u32 s75, s55, s62\ns_add_u32 s75, s75, 368640")
        p("s_mul_i32 s62, s53, 36864\ns_add_u32 s55, s55, 294912\ns_add_u32 s76, s55, s62\ns_sub_u32 s77, s55, s62\ns_add_u32 s77, s77, 36864")
        p("s_sub_u32 s64, s77, 36864\ns_cmp_lt_u32 s50, 2\ns_cselect_b32 s64, s76, s64")
        p("s_mul_i32 s55, s50, 18432\ns_mul_i32 s62, s2, 73728\ns_add_u32 s62, s62, s55\nv_lshl_add_u32 v31, v1, 4, s62")
        p("s_xor_b32 s63, s2, 8\ns_mul_i32 s62, s63, 73728\ns_add_u32 s62, s62, s55\nv_lshl_add_u32 v32, v1, 4, s62")
        p("s_mul_i32 s55, s52, 589824\ns_mul_i32 s62, s50, 147456\ns_add_u32 s55, s55, s62\ns_mul_i32 s62, s51, 9216\ns_add_u32 s55, s55, s62\ns_add_u32 s55, s55, 0x%x" % PART)
        p("s_mov_b32 s62, 73728\nv_and_b32 v86, 15, v1\nv_lshlrev_b32 v86, 4, v86\nv_lshl_add_u32 v86, v89, 8, v86\nv_mad_u32_u24 v86, v85, s62, v86\nv_add_u32 v33, s55, v86")
        p("v_cmp_eq_u32 vcc, 0, v1\nv_mov_b32 v86, 0x%x" % OOB)
        p("s_lshl_b32 s55, s2, 2\ns_add_u32 s55, s55, s50\ns_lshl_b32 s55, s55, 6\ns_add_u32 s55, s55, 0x%x\nv_mov_b32 v87, s55\nv_cndmask_b32 v36, v86, v87, vcc" % FL1)
        p("s_lshl_b32 s55, s63, 2\ns_add_u32 s55, s55, s50\ns_lshl_b32 s55, s55, 6\ns_add_u32 s55, s55, 0x%x\nv_mov_b32 v37, s55" % FL1)
        p("s_lshl_b32 s55, s59, 5\ns_add_u32 s55, s55, 0x%x\ns_lshl_b32 s62, s59, 2\ns_add_u32 s62, s62, 0x%x" % (YB, FLY))
        p("s_cmp_lt_u32 s2, 144\ns_cselect_b32 s55, s55, 0x%x\ns_cselect_b32 s62, s62, 0x%x" % (OOB, OOB))
        p("v_mov_b32 v87, s62\nv_cndmask_b32 v35, v86, v87, vcc")
        p("s_movk_i32 s62, 18432\nv_and_b32 v86, 15, v1\nv_lshrrev_b32 v87, 4, v1\nv_lshlrev_b32 v87, 3, v87\nv_mad_u32_u24 v86, v86, s62, v87\nv_add_u32 v38, s55, v86")
        return p

    def dma1(self, j):
        if j < 3: so = "s_add_u32 s60, s57, 0x%x" % (j * 192 * 9216); vb = 76
        else:
            s, ss = divmod(j - 3, 6); so = "s_add_u32 s60, s56, 0x%x" % (ss * 96 * 9216 + 128 * s); vb = 2
        U = [[I(so)]]
        for m in range(2):
            U.append([I("s_add_u32 m0, s61, 0x%x" % (slot1(j) + m * 12288))])
            for i in range(3):
                U.append([I("buffer_load_dwordx4 v%d, %s, s60 offen offset:%d lds" % (vb + 3 * m + i, (SW1, SW3)[m], 1024 * i), tag="d1_%d" % j)])
        return U
    def dma2(self, t):
        sl = SLOT2[t % 4]
        if t < 8:
            b = "s74" if t < 4 else "s75"; o = (t & 3) * 64 * 1152
            U = [[I("s_add_u32 s62, %s, 0x%x" % (b, o)), I("s_add_u32 s63, %s, 0x%x" % (b, o + 36864))]]
            s0, s1, sh = "s62", "s63", "s62"
        else:
            U = []; s0, s1, sh = "s76", "s77", "s64"
        for h in range(2):
            U.append([I("s_add_u32 m0, s65, 0x%x" % (sl + 4096 * h))])
            for i in range(4):
                U.append([I("buffer_load_dwordx4 v%d, %s, %s offen offset:%d lds" % (20 + i, SW2, (s0, s1)[h], 1024 * i), tag="d2_%d" % t)])
        U.append([I("s_add_u32 m0, s66, 0x%x" % sl)])
        U.append([I("buffer_load_dwordx4 v24, %s, %s offen lds" % (SW2, sh), tag="d2_%d" % t)])
        return U

    def kgen(self):
        p = P()
        ZR, ZI, DT = 100, 102, 104
        T0, T1, T2, T3 = 106, 108, 110, 112
        def cm(Z, X, Y, t):
            return ["v_pk_mul_f32 %s, %s, %s" % (V(t, 2), V(X[1], 2), V(Y[1], 2)),
                    "v_pk_mul_f32 %s, %s, %s" % (V(t + 2, 2), V(X[0], 2), V(Y[1], 2)),
                    "v_pk_fma_f32 %s, %s, %s, %s neg_lo:[0,0,1] neg_hi:[0,0,1]" % (V(Z[0], 2), V(X[0], 2), V(Y[0], 2), V(t, 2)),
                    "v_pk_fma_f32 %s, %s, %s, %s" % (V(Z[1], 2), V(X[1], 2), V(Y[0], 2), V(t + 2, 2))]
        FA = 98
        p("s_mul_i32 s55, s50, %d\nv_lshl_add_u32 v%d, v1, 3, s55" % (FWAVE, FA))
        p("v_and_b32 v96, 15, v1\nv_mul_u32_u24 v96, %d, v96\nv_lshrrev_b32 v97, 4, v1\nv_lshl_add_u32 v96, v97, 4, v96\nv_add_u32 v99, s55, v96" % FPITCH)
        p.w(vm="par")
        p.ext(self.stamp("p"))
        for k in range(6):
            p("v_lshlrev_b32 v%d, 16, v%d\nv_and_b32 v%d, 0xffff0000, v%d" % (114 + 2 * k, 48 + k, 115 + 2 * k, 48 + k))
        p("v_lshlrev_b32 v54, 16, v54\nv_mul_f32 v54, 0x%x, v54\nv_exp_f32 v54, v54\ns_nop 0\nv_cvt_pk_bf16_f32 v54, v54, v54" % f2u(LOG2E))
        p("v_lshlrev_b32 v%d, 16, v54\nv_lshlrev_b32 v%d, 16, v54" % (DT, DT + 1))
        p("v_pk_mul_f32 %s, %s, %s\nv_pk_mul_f32 %s, %s, %s" % (V(ZR, 2), V(114, 2), V(DT, 2), V(ZI, 2), V(116, 2), V(DT, 2)))
        p("v_pk_mul_f32 %s, %s, %s\nv_pk_mul_f32 %s, %s, %s" % (V(118, 2), V(118, 2), V(DT, 2), V(120, 2), V(120, 2), V(DT, 2)))
        E = {e: (128 + 4 * e, 130 + 4 * e) for e in range(1, 8)}
        W8c = (160, 162); W128 = (164, 166)
        Gp = [(168, 170), (172, 174)]; Dp = [(176, 178), (180, 182)]; Rr = [(184, 186), (188, 190)]
        for s, Wd, conj in ((1, E[1], False), (8, W8c, True), (128, W128, False)):
            for h in range(2):
                p("v_mul_f32 v%d, 0x%x, v%d" % (T0 + h, f2u(s * LOG2E), ZR + h))
                p("v_mul_f32 v%d, 0x%x, v%d" % (T1 + h, f2u((-s if conj else s) / (2 * 3.141592653589793)), ZI + h))
            for h in range(2): p("v_exp_f32 v%d, v%d\nv_fract_f32 v%d, v%d" % (T0 + h, T0 + h, T1 + h, T1 + h))
            for h in range(2): p("v_cos_f32 v%d, v%d\nv_sin_f32 v%d, v%d" % (Wd[0] + h, T1 + h, Wd[1] + h, T1 + h))
            p("s_nop 0\nv_pk_mul_f32 %s, %s, %s\nv_pk_mul_f32 %s, %s, %s" % (V(Wd[0], 2), V(Wd[0], 2), V(T0, 2), V(Wd[1], 2), V(Wd[1], 2), V(T0, 2)))
        for x in cm(Dp[0], (122, 124), (118, 120), T0): p(x)
        p("v_pk_mul_f32 %s, %s, -1.0 op_sel_hi:[1,0]" % (V(Dp[0][1], 2), V(Dp[0][1], 2)))
        self.ob = 0; self.obase = 192
        def put(row, Z):
            o = self.obase + 2 * (self.ob % 2); self.ob += 1
            return ["v_cvt_pk_bf16_f32 v%d, v%d, v%d" % (o, Z[0], Z[1]), "v_cvt_pk_bf16_f32 v%d, v%d, v%d" % (o + 1, Z[0] + 1, Z[1] + 1),
                    "ds_write_b64 v%d, %s offset:%d" % (FA, V(o, 2), row * FPITCH)]
        c1 = put(41, Dp[0])
        for b in range(1, 16):
            c1 += cm(Dp[b & 1], Dp[(b - 1) & 1], W8c, T0) + put(41 + b, Dp[b & 1])
        self.obase = 196
        c2 = ["v_mov_b32 v208, 0x3f80", "v_mov_b32 v209, 0x3f80", "ds_write_b64 v%d, v[208:209]" % FA]
        c2 += put(1, E[1])
        for e, (x, y) in ((2, (1, 1)), (3, (2, 1)), (4, (2, 2)), (5, (4, 1)), (6, (4, 2)), (7, (4, 3))):
            c2 += cm(E[e], E[x], E[y], T2) + put(e, E[e])
        c2 += put(8, W128)
        for e in range(1, 8):
            c2 += cm(Rr[e & 1], E[e], W128, T2) + put(8 + e, Rr[e & 1])
        prev = W128
        c3 = []
        T4 = 210; self.obase = 200
        def rowof(a, e):
            if a < 4: return 16 + e // 2 + 4 * (a - 2)
            if a < 8: return 24 + e // 4 + 2 * (a - 4)
            return 32 + a - 8
        Rr2 = [(214, 216), (218, 220)]; k = 0
        for a in range(2, 17):
            cur = Gp[a & 1]
            c3 += cm(cur, prev, W128, T4) + put(rowof(a, 0), cur)
            es = (2, 4, 6) if a < 4 else ((4,) if a < 8 else ())
            for e in es:
                c3 += cm(Rr2[k & 1], cur, E[e], T4) + put(rowof(a, e), Rr2[k & 1]); k += 1
            prev = cur
        n_e = 3 + 3 + 5 * 7
        seqA = c2[:n_e]; seqB = c2[n_e:]
        def inter(*ls):
            out = []; tot = max(len(l) for l in ls); idx = [0] * len(ls)
            for s in range(1, tot + 1):
                for i, l in enumerate(ls):
                    while idx[i] < len(l) and idx[i] * tot < s * len(l): out.append(l[idx[i]]); idx[i] += 1
            return out
        n1 = len(seqA)
        allseq = inter(seqA, c1[:n1]) + inter(seqB + [], c1[n1:], c3)
        for x in allseq: p(x)
        BF = 128; AF = 160
        for s in range(8): p("ds_read_b128 %s, v99 offset:%d" % (V(BF + 4 * s, 4), 41 * FPITCH + 64 * s), tag="kb%d" % s)
        for t in range(3):
            for s in range(8): p("ds_read_b128 %s, v99 offset:%d" % (V(AF + 32 * t + 4 * s, 4), 16 * t * FPITCH + 64 * s), tag="ka%d_%d" % (t, s))
        KD = 100
        for t in range(3):
            for s in range(8):
                if s % 4 == 0: p.w(lg=["kb7", "ka%d_%d" % (t, s + 3)])
                p("v_mfma_f32_16x16x32_bf16 %s, %s, %s, %s" % (V(KD + 4 * t, 4), V(AF + 32 * t + 4 * s, 4), V(BF + 4 * s, 4), "0" if s == 0 else V(KD + 4 * t, 4)))
        return p

    def u_write(self):
        p = P()
        p("v_lshlrev_b32 v112, 4, v0\nv_sub_u32 v112, 0x%x, v112" % (UBUF + 4080))
        p("s_mov_b32 s55, 0x01000504\ns_mov_b32 s62, 0x03020706")
        p("s_mul_i32 s63, s50, %d\ns_add_u32 s63, s63, %d" % (UCH, UBUF + 4096))
        p("v_bfe_u32 v113, v1, 1, 1\nv_mul_u32_u24 v113, %d, v113\nv_and_b32 v114, 1, v1\nv_lshl_add_u32 v113, v114, 4, v113\nv_add_u32 v113, s63, v113" % UCOPY)
        for k in range(4): p("v_mov_b32 v%d, 0" % (116 + k))
        p("ds_write_b128 v113, v[116:119]")
        p.ext(self.stamp("p"))
        p.w(vm="u")
        p.ext(self.stamp("p"))
        R = lambda i, c: 56 + 2 * i + (c >> 1)
        n = 0
        for c in range(4):
            sel = "s55" if (c & 1) == 0 else "s62"
            for cp in range(2):
                o = 120 + 4 * (n % 2); n += 1
                top = 8 if cp == 1 else 7
                for k in range(4):
                    p("v_perm_b32 v%d, v%d, v%d, %s" % (o + k, R(top - 2 * k, c), R(top - 2 * k - 1, c), sel))
                p("ds_write_b128 v112, %s offset:%d" % (V(o, 4), c * UCH + cp * UCOPY), tag="uw")
        return p

    def kexpand(self):
        p = P()
        KD = 100
        p("s_mul_i32 s55, s50, %d\ns_add_u32 s55, s55, %d" % (KPITCH, KBUF))
        p("v_lshl_add_u32 v112, v1, 4, s55\nds_write_b128 v112, v[116:119]")
        p("v_and_b32 v113, 15, v1\nv_lshrrev_b32 v114, 4, v1\nv_lshl_add_u32 v113, v113, 4, s55")
        p("v_lshl_add_u32 v115, v114, 10, v113\nv_add_u32 v115, %d, v115" % (472 + 2048))
        for r in range(4):
            p("v_cvt_pk_bf16_f32 v%d, v%d, v%d\nv_cvt_pk_bf16_f32 v%d, v%d, v%d" % (120 + 2 * r, KD + 8 + r, KD + 8 + r, 121 + 2 * r, KD + 8 + r, KD + 8 + r))
        p("s_mov_b32 exec_hi, 1")
        for r in range(4):
            p("ds_write2_b64 v115, %s, %s offset0:%d offset1:%d" % (V(120 + 2 * r, 2), V(120 + 2 * r, 2), 32 * r, 32 * r + 1))
            if r == 0: p("s_mov_b32 exec_hi, 0")
        p("s_mov_b32 exec_lo, 0x55555555")
        for r in range(4): p("ds_write_b16 v115, v%d offset:%d" % (120 + 2 * r, 256 * r + 16))
        p("s_mov_b64 exec, -1")
        p("v_lshl_add_u32 v115, v114, 9, v113\nv_add_u32 v115, 476, v115")
        for h in range(2):
            k0, k4 = KD + 4 + 2 * h, KD + 5 + 2 * h; o = 128 + 4 * h
            p("v_cvt_pk_bf16_f32 v%d, v%d, v%d\nv_cvt_pk_bf16_f32 v%d, v%d, v%d\nv_cvt_pk_bf16_f32 v%d, v%d, v%d" % (o, k0, k0, o + 1, k0, k4, o + 2, k4, k4))
        p("v_lshl_add_u32 v112, v114, 8, v113\nv_add_u32 v112, %d, v112" % (478 + 512))
        k = KD + 4
        p("v_cvt_pk_bf16_f32 v136, v%d, v%d\nv_cvt_pk_bf16_f32 v137, v%d, v%d\nv_cvt_pk_bf16_f32 v138, v%d, v%d\nv_cvt_pk_bf16_f32 v139, v%d, v%d" % (k, k, k + 1, k + 2, k + 2, k + 2, k + 3, k + 3))
        p("s_mov_b32 exec_lo, 0")
        for h in range(2):
            o = 128 + 4 * h
            p("ds_write_b96 v115, %s offset:%d\nds_write_b32 v115, v%d offset:%d" % (V(o, 3), 256 * h + 4, o, 256 * h))
        p("s_mov_b32 exec_lo, -1\ns_mov_b32 exec_hi, 0")
        p("ds_write_b96 v112, v[136:138] offset:2\nds_write_b16 v112, v139 offset:14\nds_write_b16 v112, v136")
        p("s_mov_b64 exec, -1")
        p("v_lshrrev_b32 v115, 1, v114\nv_lshl_add_u32 v115, v115, 8, v113\nv_and_b32 v114, 1, v114\nv_lshl_add_u32 v115, v114, 3, v115")
        p("v_cvt_pk_bf16_f32 v140, v%d, v%d\nv_cvt_pk_bf16_f32 v141, v%d, v%d" % (KD, KD + 1, KD + 2, KD + 3))
        p("ds_write_b64 v115, v[140:141] offset:480")
        return p

    def conv(self):
        p = P()
        p("v_and_b32 v113, 15, v1\nv_lshrrev_b32 v114, 4, v1\nv_lshlrev_b32 v115, 4, v114")
        p("v_lshl_add_u32 v112, v113, 5, v115\nv_add_u32 v112, s55, v112")
        p("v_and_b32 v116, 1, v113\nv_mul_u32_u24 v116, %d, v116\nv_and_b32 v113, 14, v113\nv_lshlrev_b32 v113, 1, v113\nv_sub_u32 v113, v116, v113\nv_add_u32 v113, v115, v113" % UCOPY)
        p("s_mul_i32 s62, s50, %d\ns_add_u32 s62, s62, %d" % (UCH, UBUF + 4092 - 32 - 448 - 512))
        p("v_add_u32 v113, s62, v113")
        for k in (1, 2, 3): p("v_subrev_u32 v%d, %d, v113" % (113 + k, 1024 * k))
        ACC = 48; AB = [128, 192]
        pairs = sorted([(a, c) for a in range(8) for c in range(8 - a)], key=lambda x: (max(x), x[0] + x[1]))
        def rd(b):
            U = []; s = AB[b & 1]
            for i in range(8):
                o = 128 * (1 - (i & 1)) + 16 * b
                U.append([I("ds_read2_b32 %s, v%d offset0:%d offset1:%d" % (V(s + 4 * i, 2), 113 + (i >> 1), o, o + 1), tag="ca%d_%d" % (b, i))])
                U.append([I("ds_read2_b32 %s, v%d offset0:%d offset1:%d" % (V(s + 4 * i + 2, 2), 113 + (i >> 1), o + 2, o + 3), tag="ca%d_%d" % (b, i))])
                U.append([I("ds_read_b128 %s, v112 offset:%d" % (V(s + 32 + 4 * i, 4), 512 * i + 64 * b), tag="cb%d_%d" % (b, i))])
            return U
        for u in rd(0): p.ext(u)
        S = Sched(288); seen = set()
        for b in range(8):
            s = AB[b & 1]
            for k, (a, c) in enumerate(pairs):
                g = 36 * b + k; T = a + c
                S.m[g] = I("v_mfma_f32_16x16x32_bf16 %s, %s, %s, %s" % (V(ACC + 4 * T, 4), V(s + 4 * a, 4), V(s + 32 + 4 * c, 4), V(ACC + 4 * T, 4) if T in seen else "0"))
                seen.add(T)
                mx = max(a, c)
                if k == 0 or max(pairs[k - 1]) != mx: S.before(g, W(lg=["ca%d_%d" % (b, mx), "cb%d_%d" % (b, mx)]))
            if b < 7: S.spread(rd(b + 1), 36 * b + 6, 36 * b + 33, look=0)
        p.ext(S.items())
        return p

    def y_store(self):
        p = P()
        p("s_nop 7")
        for T in range(8):
            p("v_cvt_pk_bf16_f32 v%d, v%d, v%d\nv_cvt_pk_bf16_f32 v%d, v%d, v%d" % (96 + 2 * T, 48 + 4 * T, 49 + 4 * T, 97 + 2 * T, 50 + 4 * T, 51 + 4 * T))
        for T in range(8):
            if T: p("s_mov_b32 s55, %d" % (T * 294912))
            p("buffer_store_dwordx2 %s, v38, %s, %s offen sc1" % (V(96 + 2 * T, 2), SWS, "s55" if T else "0"), tag="yst")
        return p

    def check(self, name, vflag, load):
        k = len(self.slow)
        cmpi = "v_cmp_ne_u32 vcc, v%d, v%d" % (vflag, NONCE) if name != "nonce" else "v_cmp_eq_u32 vcc, 0, v%d" % NONCE
        sl = P()
        sl.label("SLOW%d" % k); sl("s_mov_b32 s78, %d" % SPIN); sl.label("SLOWL%d" % k)
        sl(load); sl("s_waitcnt vmcnt(0)"); sl(cmpi); sl("s_cbranch_vccz BACK%d" % k)
        sl("s_sub_u32 s78, s78, 1\ns_cmp_lg_u32 s78, 0\ns_cbranch_scc1 SLOWL%d\ns_branch BACK%d" % (k, k))
        self.slow.append(sl)
        return [I(cmpi), I("s_cbranch_vccnz SLOW%d" % k), I("BACK%d:" % k)]

    def gemm(self):
        N1 = 648; N = 972; PREF = 8; NB = 12
        S = Sched(N); reads = [None] * N
        ACC = lambda q: 112 + 16 * q
        tile_end = {}; tile_start = {}
        for j in range(27):
            sl = slot1(j); setB = sl >= 3 * SLOT1; so = sl - (3 * SLOT1 if setB else 0)
            for i in range(24):
                g = 24 * j + i
                if j < 3:
                    q, kk = divmod(i, 12); st = -1; ks = 12 * j + kk; acc = ACC(2 + q); first = (j == 0 and kk == 0); last = (j == 2 and kk == 11)
                    va = (18 if setB else 16) + q; o = so + kk * 1024; o2 = o + 256
                else:
                    st, ss = divmod(j - 3, 6); q, kk = divmod(i, 6); ks = 6 * ss + kk; acc = ACC(q); first = (ss == 0 and kk == 0); last = (ss == 5 and kk == 5)
                    va = (12 if setB else 8) + q; o = so + kk * 2048; o2 = o + 512
                if first: tile_start[(st, q)] = g
                if last: tile_end[(st, q)] = g
                fb = 144 + 4 * (g % NB)
                S.m[g] = I("v_mfma_f32_32x32x16_bf16 %s, %s, %s, %s" % (V(acc, 16), A(fb, 4), A(4 * ks, 4), "0" if first else V(acc, 16)))
                reads[g] = [I("ds_read_b64_tr_b16 %s, v%d offset:%d" % (A(fb, 2), va, o)), I("ds_read_b64_tr_b16 %s, v%d offset:%d" % (A(fb + 2, 2), va, o2), tag="r%d" % g)]
        ACC2 = lambda dt: 176 + 16 * dt if dt < 5 else 112 + 16 * (dt - 5)
        order = []
        for t in range(7): order += [(t, dt, ks) for dt in range(9) for ks in range(4)]
        for dt in range(9): order += [(7, dt, ks) for ks in range(4)] + [(8, dt, ks) for ks in range(4)]
        end2 = {}; start2 = {}
        for i, (t, dt, ks) in enumerate(order):
            g = N1 + i; rs = 25 + 3 * (t & 1)
            if dt < 8: va = rs + (dt & 1); o = (dt >> 1) * 8192 + ks * 2048; o2 = o + 1024
            else: va = rs + 2; o = ks * 1024; o2 = o + 512
            if t < 4: b = A(192 + 16 * t + 4 * ks, 4)
            elif t < 8: b = A(16 * (t - 4) + 4 * ks, 4)
            else: b = V(40 + 4 * ks, 4) if ks < 2 else A(64 + 4 * (ks - 2), 4)
            first = (t == 0 and ks == 0)
            if first: start2[dt] = g
            if t == 8 and ks == 3: end2[dt] = g
            acc = ACC2(dt); fb = 144 + 4 * (g % NB)
            S.m[g] = I("v_mfma_f32_32x32x16_bf16 %s, %s, %s, %s" % (V(acc, 16), A(fb, 4), b, "0" if first else V(acc, 16)))
            reads[g] = [I("ds_read_b64_tr_b16 %s, v%d offset:%d" % (A(fb, 2), va, o)), I("ds_read_b64_tr_b16 %s, v%d offset:%d" % (A(fb + 2, 2), va, o2), tag="r%d" % g)]
        pre = P()
        for g in range(PREF): pre.ext(reads[g])
        for g in range(PREF, N): S.at(g - PREF, reads[g])
        for g in range(0, N, 4): S.before(g, W(lg="r%d" % (g + 3)))
        W2 = lambda t: N1 + 36 * t
        BP = 8
        for j in range(27):
            g = 24 * j + BP
            S.at(g, [W(vm=("d1_%d" % (j + 1)) if j < 26 else "d2_0"), I("s_barrier")])
            extra = []
            if j == 1: extra = [[I("buffer_load_dword v%d, off, %s, 0 sc1" % (NONCE, SDBG), tag="nonce")]]
            if j == 2: extra = [[W(vm="nonce")] + self.check("nonce", NONCE, "buffer_load_dword v%d, off, %s, 0 sc1" % (NONCE, SDBG))]
            if j == 4: extra = [[W(vm="yst"), I("buffer_store_dword v%d, v35, %s, 0 offen sc1" % (NONCE, SWS))]]
            if j <= 22: U = self.dma1(j + 4)
            elif j <= 25: U = self.dma2(j - 23)
            else: U = []
            if extra or U: S.spread(extra + U, g + 1, g + 14, look=1)
        for t in range(7):
            g = W2(t) + (12 if t < 6 else 26)
            S.at(g, [W(vm=["d2_%d" % (t + 1)] + (["d2_8"] if t == 6 else [])), I("s_barrier")])
            extra = []
            ld1 = "buffer_load_dword v35, v37, %s, 0 offen sc1" % SWS
            ld2 = "buffer_load_dword v35, v39, %s, 0 offen sc1" % SWS
            if t == 0: extra = [[W(vm="h11"), I("buffer_store_dword v%d, v36, %s, 0 offen sc1" % (NONCE, SWS))]]
            if t == 1: extra = [[I(ld1, tag="fl1")], [I("v_add_u32 v39, 0x10000, v37")], [I("v_add_u32 v36, 0x10000, v36")]]
            if t == 2:
                extra = [[W(vm="fl1")] + self.check("f1", 35, ld1)]
                for s in list(range(12)) + [16, 17]:
                    dst = 4 * s if s < 16 else 64 + 4 * (s - 16)
                    extra.append([I("buffer_load_dwordx4 %s, v32, %s, %s offen offset:%d sc1" % (A(dst, 4), SWS, SK[s >> 2], 1024 * (s & 3)), tag="ph%d" % s)])
            if t == 3: extra = [[W(vm="h15"), I("buffer_store_dword v%d, v36, %s, 0 offen sc1" % (NONCE, SWS))]]
            if t == 4: extra = [[I(ld2, tag="fl2")]]
            if t == 5:
                extra = [[W(vm="fl2")] + self.check("f2", 35, ld2)]
                for s in range(12, 16):
                    extra.append([I("buffer_load_dwordx4 %s, v32, %s, %s offen offset:%d sc1" % (A(4 * s, 4), SWS, SK[s >> 2], 1024 * (s & 3)), tag="ph%d" % s)])
            U = self.dma2(t + 3) if t <= 5 else []
            if extra or U: S.spread(extra + U, g + 1, g + 23, look=1)
        S.before(W2(4), W(vm="ph3")); S.before(W2(5), W(vm="ph7")); S.before(W2(6), W(vm=["ph11", "ph17"])); S.before(W2(7), W(vm="ph15"))
        for t in range(7):
            rs = 25 + 3 * (t & 1); d = (SLOT2[(t + 2) % 4] - SLOT2[t % 4]) & 0xffffffff
            g = W2(t + 1) - PREF
            if t == 6: S.at(g - 1, [I("v_add_u32 v%d, 0x%x, v%d" % (rs + k, d, rs + k)) for k in range(3)])
            else: S.spread([[I("v_add_u32 v%d, 0x%x, v%d" % (rs + k, d, rs + k))] for k in range(3)], g, g + 6)
        def epiA(acc, T):
            U = []
            for k in range(4):
                U.append([I("v_pk_mul_f32 %s, %s, s[68:69]" % (V(T + 2 * k, 2), V(acc + 2 * k, 2)))])
                U.append([I("v_pk_mul_f32 %s, %s, %s" % (V(T + 8 + 2 * k, 2), V(acc + 2 * k, 2), V(acc + 8 + 2 * k, 2)))])
            return U
        def epiB(T, slot):
            U = []
            for k in range(8): U.append([I("v_exp_f32 v%d, v%d" % (T + k, T + k))])
            for k in range(4): U.append([I("v_pk_add_f32 %s, %s, s[70:71]" % (V(T + 2 * k, 2), V(T + 2 * k, 2)))])
            for k in range(8): U.append([I("v_rcp_f32 v%d, v%d" % (T + k, T + k))])
            for k in range(4): U.append([I("v_pk_mul_f32 %s, %s, %s" % (V(T + 8 + 2 * k, 2), V(T + 8 + 2 * k, 2), V(T + 2 * k, 2)))])
            D = T if slot < 16 else 40 + 4 * (slot - 16)
            for k in range(4): U.append([I("v_cvt_pk_bf16_f32 v%d, v%d, v%d" % (D + k, T + 8 + 2 * k, T + 9 + 2 * k))])
            U.append([I("buffer_store_dwordx4 %s, v31, %s, %s offen offset:%d sc1" % (V(D, 4), SWS, SK[slot >> 2], 1024 * (slot & 3)), tag="h%d" % slot)])
            if slot < 16:
                for k in range(4): U.append([I("v_accvgpr_write_b32 a%d, v%d" % (192 + 4 * slot + k, D + k))])
            return U
        for st in range(-1, 4):
            qs = (0, 1) if st < 0 else (0, 1, 2, 3)
            lastA = 0
            for q in qs:
                aq = q + 2 if st < 0 else q
                nxt = tile_start[(st + 1, aq)] if st < 3 else start2[5 + aq]
                lo = tile_end[(st, q)] + 4
                lastA = S.spread(epiA(ACC(aq), 48 + 16 * aq), lo, min(nxt - 1, lo + 9))
            U = []
            for q in qs:
                aq = q + 2 if st < 0 else q
                U += epiB(48 + 16 * aq, 16 + q if st < 0 else 4 * st + q)
            hi = (tile_end[(st + 1, 0)] - 2) if st < 3 else W2(3) - 4
            S.spread(U, lastA + 1, hi)
        tailU = []
        for dt in range(9):
            acc = ACC2(dt); T = 48 + 8 * (dt % 8); U = []
            for k in range(8): U.append([I("v_cvt_pk_bf16_f32 v%d, v%d, v%d" % (T + k, acc + 2 * k, acc + 2 * k + 1))])
            for x, y in ((0, 2), (1, 3), (4, 6), (5, 7)): U.append([I("v_permlane32_swap_b32 v%d, v%d" % (T + x, T + y))])
            for h in range(2):
                hb = 2 * dt + h
                U.append([I("buffer_store_dwordx4 %s, v33, %s, %s offen offset:%d sc1" % (V(T + 4 * h, 4), SWS, SK[hb >> 3], 512 * (hb & 7)), tag="pst")])
            if dt < 8: S.spread(U, end2[dt] + 4, min(end2[dt] + 11, N - 1), look=1)
            else: tailU = U
        if self.stamps:
            S.at(N1 - 1, self.stamp())
        self.costs = S.cost
        p = P(); p.ext(pre); p.ext(S.items())
        p.ext(self.stamp())
        for u in tailU: p.ext(u)
        return p

    def spin(self, p, name, vaddr):
        p("s_mov_b32 s78, %d" % SPIN); p.label(name)
        p("buffer_load_dword v35, v%d, %s, 0 offen sc1\ns_waitcnt vmcnt(0)\nv_cmp_ne_u32 vcc, v35, v%d\ns_cbranch_vccz %s_D" % (vaddr, SWS, NONCE, name))
        p("s_sub_u32 s78, s78, 1\ns_cmp_lg_u32 s78, 0\ns_cbranch_scc1 %s" % name); p.label(name + "_D")
    def tail(self):
        p = P()
        p("v_and_b32 v2, 15, v1\nv_lshrrev_b32 v3, 4, v1\ns_lshl_b32 s55, s54, 7\ns_lshl_b32 s56, s51, 4\ns_add_u32 s55, s55, s56")
        p("s_movk_i32 s57, 1152\nv_add_u32 v4, s55, v2\nv_mul_lo_u32 v4, v4, s57\nv_mul_u32_u24 v5, 288, v3\nv_add_u32 v6, v4, v5")
        p("s_nop 1")
        for i in range(18):
            p("buffer_load_dwordx4 %s, v6, %s, 0 offen offset:%d" % (V(112 + 4 * i, 4), SX, 16 * i), tag="gx%d" % i)
            p("global_load_dwordx4 %s, v5, s[48:49] offset:%d" % (V(184 + 4 * i, 4), 16 * i), tag="gw%d" % i)
        p("s_lshl_b32 s55, s52, 2\ns_add_u32 s55, s55, s50\ns_lshl_b32 s55, s55, 6\ns_lshl_b32 s56, s51, 2\ns_add_u32 s55, s55, s56\ns_add_u32 s55, s55, 0x%x" % FL2)
        p("v_cmp_eq_u32 vcc, 0, v1\nv_mov_b32 v7, 0x%x\nv_mov_b32 v8, s55\nv_cndmask_b32 v7, v7, v8, vcc" % OOB)
        p.w(vm="pst")
        p("buffer_store_dword v%d, v7, %s, 0 offen sc1" % (NONCE, SWS))
        p.ext(self.stamp())
        p("s_mul_i32 s58, s53, 320\ns_lshl_b32 s55, s50, 5\ns_add_u32 s58, s58, s55\ns_add_u32 s59, s58, 128\ns_lshl_b32 s60, s53, 5\ns_add_u32 s60, s60, 256")
        p("v_and_b32 v8, 31, v1\nv_lshrrev_b32 v9, 5, v1\nv_lshl_add_u32 v9, v9, 7, v8\nv_add_u32 v9, s58, v9\nv_lshlrev_b32 v9, 2, v9\nv_add_u32 v9, 0x%x, v9" % FLY)
        p("v_add_u32 v8, s60, v8\nv_lshlrev_b32 v8, 2, v8\nv_add_u32 v8, 0x%x, v8" % FLY)
        for i in range(18):
            if i % 6 == 0: p.w(vm=["gx%d" % (i + 5), "gw%d" % (i + 5)])
            for k in range(4):
                p("v_dot2_f32_bf16 v%d, v%d, v%d, %s" % (10 + k, 112 + 4 * i + k, 184 + 4 * i + k, "0" if i == 0 else "v%d" % (10 + k)))
        p("v_add_f32 v10, v10, v11\nv_add_f32 v12, v12, v13\nv_add_f32 v10, v10, v12\nv_mov_b32 v11, v10\nv_permlane32_swap_b32 v10, v11\nv_add_f32 v10, v10, v11")
        p("v_mov_b32 v11, v10\nv_permlane16_swap_b32 v10, v11\nv_add_f32 v10, v10, v11")
        p("v_cvt_pk_bf16_f32 v10, v10, v10\nv_lshlrev_b32 v10, 16, v10\nv_mul_f32 v10, s68, v10\nv_exp_f32 v10, v10\nv_add_f32 v10, 1.0, v10\nv_rcp_f32 v10, v10")
        p("v_cvt_pk_bf16_f32 v10, v10, v10\nv_lshlrev_b32 v10, 16, v10\nv_sub_f32 v11, 1.0, v10\nv_cvt_pk_bf16_f32 v11, v11, v11\nv_lshlrev_b32 v11, 16, v11")
        self.spin(p, "YP0", 9); self.spin(p, "YP1", 8)
        p("s_lshl_b32 s55, s54, 3\ns_add_u32 s55, s55, s51\ns_mul_i32 s55, s55, 18432\ns_add_u32 s55, s55, 0x%x\nv_lshl_add_u32 v12, v1, 4, s55" % YB)
        p("v_lshlrev_b32 v13, 4, v3\nv_add_u32 v14, v4, v13")
        p("s_lshl_b32 s55, s50, 12\nv_lshl_add_u32 v15, v1, 4, s55\nv_lshlrev_b32 v16, 3, v2\nv_lshl_add_u32 v16, v3, 8, v16\nv_add_u32 v16, s55, v16")
        p("s_lshl_b32 s55, s50, 4\ns_mov_b32 s62, 0xffff\ns_mov_b32 s63, 0\ns_lshl_b64 s[62:63], s[62:63], s55")
        for k in range(3):
            p("s_lshl_b32 s%d, s%d, 1\ns_lshl_b32 s%d, s%d, 5" % (74 + k, 58 + k, 64 + k, 58 + k))
        for k in range(3):
            if k == 2: p("s_mov_b64 exec, s[62:63]")
            p("buffer_load_dwordx4 %s, v12, %s, s%d offen sc1" % (V(112 + 4 * k, 4), SWS, 64 + k), tag="y%d" % k)
            p("buffer_load_dwordx4 %s, v14, %s, s%d offen" % (V(124 + 4 * k, 4), SX, 74 + k), tag="fx%d" % k)
            p("v_add_u32 v17, s%d, v13\nglobal_load_dwordx4 %s, v17, s[46:47]" % (74 + k, V(136 + 4 * k, 4)), tag="fd%d" % k)
        p("s_mov_b64 exec, -1")
        for k in range(3):
            p.w(vm="y%d" % k)
            p("ds_write_b128 v15, %s offset:%d" % (V(112 + 4 * k, 4), 1024 * k))
            p("ds_read_b64_tr_b16 %s, v16 offset:%d" % (V(148 + 4 * k, 2), 1024 * k))
            p("ds_read_b64_tr_b16 %s, v16 offset:%d" % (V(150 + 4 * k, 2), 1024 * k + 128), tag="yt%d" % k)
        p("s_mov_b32 s57, 0xffff0000")
        for k in range(3):
            p.w(vm="fd%d" % k, lg="yt%d" % k)
            for i in range(4):
                x, d, y, o = 124 + 4 * k + i, 136 + 4 * k + i, 148 + 4 * k + i, 160 + 8 * k + 2 * i
                p("v_lshlrev_b32 v18, 16, v%d\nv_and_b32 v19, s57, v%d\nv_lshlrev_b32 v20, 16, v%d\nv_and_b32 v21, s57, v%d" % (x, x, d, d))
                p("v_lshlrev_b32 v22, 16, v%d\nv_and_b32 v23, s57, v%d" % (y, y))
                p("v_pk_fma_f32 v[22:23], v[18:19], v[20:21], v[22:23]")
                p("v_pk_mul_f32 %s, v[22:23], v[10:11] op_sel_hi:[1,0]" % V(o, 2))
        p("s_lshl_b32 s55, s52, 2\ns_lshr_b32 s56, s51, 1\ns_add_u32 s55, s55, s56\ns_lshl_b32 s55, s55, 6\ns_add_u32 s55, s55, 0x%x" % FL2)
        p("v_and_b32 v8, 7, v1\nv_lshl_add_u32 v8, v8, 2, s55")
        p("s_mul_i32 s55, s52, 589824\ns_mul_i32 s56, s51, 73728\ns_add_u32 s55, s55, s56\ns_add_u32 s55, s55, 0x%x\nv_lshl_add_u32 v9, v1, 4, s55" % PART)
        p("s_lshl_b32 s55, s50, 10\nv_add_u32 v12, s55, v9\nv_add_u32 v17, 4096, v12\nv_add_u32 v9, 8192, v9")
        p.ext(self.stamp())
        self.spin(p, "PP", 8)
        p.ext(self.stamp())
        LB = [48, 80, 184]
        for k in range(3):
            if k == 2: p("s_mov_b64 exec, s[62:63]")
            for s in range(8):
                if s: p("s_mov_b32 s55, %d" % (9216 * s))
                p("buffer_load_dwordx4 %s, v%d, %s, %s offen sc1" % (V(LB[k] + 4 * s, 4), (12, 17, 9)[k], SWS, "s55" if s else "0"), tag="pl%d_%d" % (k, s))
        p("s_mov_b64 exec, -1")
        p("s_mov_b32 s55, 0x3f80\ns_mov_b32 s56, 0x3f800000")
        for k in range(3):
            B = 112 + 8 * k
            for s in range(8):
                if s % 2 == 0: p.w(vm="pl%d_%d" % (k, s + 1))
                for i in range(4):
                    for h in range(2):
                        p("v_dot2_f32_bf16 v%d, v%d, %s, %s" % (B + 2 * i + h, LB[k] + 4 * s + i, ("s55", "s56")[h], "0" if s == 0 else "v%d" % (B + 2 * i + h)))
            for i in range(4):
                p("v_pk_fma_f32 %s, %s, v[10:11], %s op_sel:[0,1,0] op_sel_hi:[1,1,1]" % (V(B + 2 * i, 2), V(B + 2 * i, 2), V(160 + 8 * k + 2 * i, 2)))
            for i in range(4):
                p("v_cvt_pk_bf16_f32 v%d, v%d, v%d" % (136 + 4 * k + i, B + 2 * i, B + 2 * i + 1))
            if k == 2: p("s_mov_b64 exec, s[62:63]")
            p("buffer_store_dwordx4 %s, v14, %s, s%d offen" % (V(136 + 4 * k, 4), SOUT, 74 + k))
        p("s_mov_b64 exec, -1")
        return p

    def stamp_store(self):
        p = P()
        if not self.stamps: return p
        p.ext(self.stamp("m"))
        p("s_waitcnt lgkmcnt(0)")
        p("s_lshl_b32 s55, s2, 2\ns_add_u32 s55, s55, s50\ns_lshl_b32 s55, s55, 5\ns_add_u32 s55, s55, 0x%x\nv_mov_b32 v2, s55" % STAMP)
        for k in range(self.nst):
            p("v_mov_b32 v3, s%d\nbuffer_store_dword v3, v2, %s, 0 offen offset:%d" % (84 + 2 * k, SWS, 4 * k))
        return p

    def build(self):
        p = P()
        p.ext(self.setup()); p.ext(self.conv_loads()); p.ext(self.common_loads()); p.ext(self.addr_setup())
        p("s_cmp_ge_u32 s2, 144\ns_cbranch_scc1 NOKGEN")
        p.ext(self.kgen()); p.ext(self.u_write())
        p("s_waitcnt lgkmcnt(0)\ns_barrier")
        p.label("NOKGEN")
        p.ext(self.stamp("p"))
        for j in range(4):
            for u in self.dma1(j): p.ext(u)
        p("s_cmp_ge_u32 s2, 144\ns_cbranch_scc1 NOCONV")
        p.ext(self.kexpand()); p.ext(self.conv())
        p.label("NOCONV")
        p.ext(self.stamp("p"))
        if "p" in self.o.get("grp", ""):
            p.w(vm="x35"); p.ext(self.stamp("p"))
        p.ext(self.y_store())
        p.w(vm="d1_0"); p("s_barrier")
        p.ext(self.stamp("mp"[1 if "p" in self.o.get("grp", "") else 0]))
        p.ext(self.gemm()); p.ext(self.tail()); p.ext(self.stamp_store())
        p("s_endpgm")
        items = resolve_waits(p.items)
        for sl in self.slow: items += sl.items
        items.append(I("END:"))
        items, nn = pad_hazards(items, verbose=self.o.get("v", False))
        body = render(items)
        print("instrs", len(items), "nops", nn, "maxcost", max(self.costs), "hist", sorted({c: self.costs.count(c) for c in set(self.costs)}.items()))
        return body

def main(out, stamps=False, opts=None):
    g = G(stamps, opts)
    body = g.build()
    txt = build_file([(KN, 256, 256, 163840)], [(KN, body, 512, 256)])
    open(out, "w").write(txt)
    return assemble(out, KN)

if __name__ == "__main__":
    main("k_dbg.s", stamps=True, opts={"v": "-v" in sys.argv})
    main("k_cyc.s", stamps=True, opts={"cyc": True})
    main("k_pro.s", stamps=True, opts={"grp": "0p"})
    main("k.s", stamps=False)
    main("k_cpf.s", stamps=True, opts={"cpf": 370})
    main("k_cpf_ns.s", stamps=False, opts={"cpf": 370})
```

```python
import re

TRANS = ("v_exp_f32", "v_log_f32", "v_rcp_f32", "v_rsq_f32", "v_sqrt_f32", "v_sin_f32", "v_cos_f32")

def parse_reg(tok):
    tok = tok.strip()
    m = re.fullmatch(r"([vas])(\d+)", tok)
    if m:
        return {(m.group(1), int(m.group(2)))}
    m = re.fullmatch(r"([vas])\[(\d+):(\d+)\]", tok)
    if m:
        return {(m.group(1), i) for i in range(int(m.group(2)), int(m.group(3)) + 1)}
    if tok == "vcc":
        return {("s", 106), ("s", 107)}
    if tok == "vcc_lo": return {("s", 106)}
    if tok == "vcc_hi": return {("s", 107)}
    if tok == "m0":
        return {("s", 124)}
    if tok == "exec": return {("s", 126), ("s", 127)}
    if tok == "exec_lo": return {("s", 126)}
    if tok == "exec_hi": return {("s", 127)}
    return set()

class I:
    __slots__ = ("txt", "op", "kind", "dst", "src", "tag", "cost", "passes", "srcc", "wide", "isdma", "ab")
    def __init__(self, txt, tag=None, cost=None):
        self.txt = txt.strip()
        self.tag = tag
        sp = self.txt.split(None, 1)
        self.op = op = sp[0]
        rest = sp[1] if len(sp) > 1 else ""
        ops = [o.strip() for o in rest.split(",")] if rest else []
        mods = ""
        if ops:
            l = ops[-1].split(None, 1)
            ops[-1] = l[0]
            mods = l[1] if len(l) > 1 else ""
        R = [parse_reg(o) for o in ops]
        U = lambda xs: set().union(*xs) if xs else set()
        self.passes = 0; self.srcc = set(); self.wide = False; self.isdma = False; self.ab = set()
        self.cost = 1
        if op.endswith(":"):
            self.kind = "label"; self.dst = set(); self.src = set(); self.cost = 0
        elif op.startswith("v_mfma"):
            self.kind = "mfma"; self.dst = R[0]; self.src = U(R[1:]); self.srcc = R[3]; self.ab = R[1] | R[2]
            self.passes = 8 if "32x32" in op else 4
        elif op.startswith("v_"):
            self.kind = "valu"
            if op in TRANS: self.kind = "trans"; self.cost = 2
            if op.startswith("v_dot"): self.kind = "dot"
            if op.startswith("v_permlane"):
                self.dst = R[0] | R[1]; self.src = R[0] | R[1]
            else:
                self.dst = R[0]; self.src = U(R[1:])
                if op.startswith("v_cndmask") and len(ops) == 3: self.src |= parse_reg("vcc")
                if op.startswith("v_dot2c") or op.startswith("v_fmac") or op.startswith("v_pk_fmac"): self.src |= R[0]
                if op.startswith("v_dot"): self.srcc = R[3] if len(R) > 3 else R[0]; self.ab = R[1] | R[2]
        elif op.startswith("ds_"):
            self.kind = "lds"
            if "read" in op: self.dst = R[0]; self.src = U(R[1:])
            else: self.dst = set(); self.src = U(R)
        elif op.startswith("buffer_") or op.startswith("global_"):
            self.kind = "vmem"
            islds = re.search(r"\blds\b", mods) is not None
            if "load" in op and not islds: self.dst = R[0]; self.src = U(R[1:])
            elif islds: self.dst = set(); self.src = U(R) | parse_reg("m0"); self.isdma = True
            else:
                self.dst = set(); self.src = U(R)
                if "x4" in op or "x3" in op: self.wide = True; self.ab = R[0] if op.startswith("buffer") else R[1]
        elif op.startswith("s_load") or op in ("s_memtime", "s_memrealtime"):
            self.kind = "smem"; self.dst = R[0]; self.src = U(R[1:])
        elif op.startswith("s_"):
            self.kind = "salu"
            if op.startswith(("s_cmp", "s_waitcnt", "s_barrier", "s_cbranch", "s_branch", "s_nop", "s_endpgm", "s_setprio", "s_sleep", "s_bitcmp")):
                self.dst = set(); self.src = U(R)
            else:
                self.dst = R[0]; self.src = U(R[1:])
                if "saveexec" in op: self.dst = self.dst | parse_reg("exec")
        elif op.startswith(";") or op.startswith("."):
            self.kind = "label"; self.dst = set(); self.src = set(); self.cost = 0
        else:
            raise ValueError(txt)
        if cost is not None: self.cost = cost
    def __repr__(self): return self.txt

class W:
    __slots__ = ("vm", "lg", "cost", "kind")
    def __init__(self, vm=None, lg=None):
        f = lambda x: [] if x is None else (list(x) if isinstance(x, (list, tuple, set)) else [x])
        self.vm = f(vm); self.lg = f(lg); self.cost = 1; self.kind = "wait"

class Ctl:
    def __init__(self, what, arg=None):
        self.what = what; self.arg = arg; self.cost = 0; self.kind = "ctl"

def resolve_waits(items):
    out = []
    vm = []
    lg = []
    vmdone = 0; lgdone = 0
    vmpos = {}; lgpos = {}
    smem_out = False
    saved = {}
    for it in items:
        if isinstance(it, Ctl):
            if it.what == "raw":
                out.extend(it.arg)
            continue
        if isinstance(it, W):
            parts = []
            if it.vm:
                last = max(vmpos[t] for t in it.vm)
                if last >= vmdone:
                    n = len(vm) - 1 - last
                    if n > 63: raise ValueError("vmcnt %d too large for %s" % (n, it.vm))
                    parts.append("vmcnt(%d)" % n); vmdone = last + 1
            if it.lg:
                last = max(lgpos[t] for t in it.lg)
                if last >= lgdone:
                    n = len(lg) - 1 - last
                    if smem_out: n = 0
                    n = min(n, 15) if n <= 15 else 15
                    parts.append("lgkmcnt(%d)" % n); lgdone = len(lg) - n
                    if n == 0: smem_out = False
            if parts: out.append(I("s_waitcnt " + " ".join(parts)))
            continue
        if it.kind == "vmem":
            if it.tag is not None: vmpos[it.tag] = len(vm)
            vm.append(it.tag)
        elif it.kind == "lds" or it.kind == "smem":
            if it.tag is not None: lgpos[it.tag] = len(lg)
            lg.append(it.tag)
            if it.kind == "smem": smem_out = True
        elif it.op == "s_waitcnt":
            m = re.search(r"vmcnt\((\d+)\)", it.txt)
            if m: vmdone = max(vmdone, len(vm) - int(m.group(1)))
            m = re.search(r"lgkmcnt\((\d+)\)", it.txt)
            if m:
                n = int(m.group(1))
                if n == 0: smem_out = False
                if not smem_out: lgdone = max(lgdone, len(lg) - n)
        out.append(it)
    return out

def isvalu(k): return k in ("valu", "trans", "dot")

def need_states(p, c):
    n = 0
    vg = lambda s: {r for r in s if r[0] in "va"}
    sg = lambda s: {r for r in s if r[0] == "s"}
    if isvalu(p.kind):
        pv = vg(p.dst); ps = sg(p.dst)
        if pv:
            if c.kind == "mfma" and pv & c.src: n = max(n, 2)
            if isvalu(c.kind):
                if c.op.startswith("v_permlane") and pv & c.src: n = max(n, 2)
                if c.op.startswith(("v_readfirstlane", "v_readlane")) and pv & c.src: n = max(n, 1)
                if "dpp" in c.txt or "row_" in c.txt or "quad_perm" in c.txt:
                    if pv & c.src: n = max(n, 2)
                if p.kind == "trans" and c.kind != "trans" and pv & c.src: n = max(n, 1)
                if p.kind == "dot":
                    if c.op == p.op:
                        if pv & c.ab: n = max(n, 3)
                    elif pv & (c.src | c.dst): n = max(n, 3)
            if p.kind == "dot" and c.kind in ("vmem", "lds", "mfma") and pv & c.src: n = max(n, 3)
            if p.kind == "trans" and c.kind in ("vmem", "lds") and pv & c.src: n = max(n, 1)
        if ps:
            if c.kind == "vmem" and ps & c.src: n = max(n, 5)
            if isvalu(c.kind) and ps & c.src: n = max(n, 2)
            if c.kind == "salu" and ps & c.src: n = max(n, 1)
    elif p.kind == "mfma":
        big = 12 if p.passes == 8 else 8
        if c.kind == "mfma":
            if p.dst & c.ab: n = max(n, big)
            if p.dst & c.srcc and not (p.dst == c.srcc and p.passes == c.passes): n = max(n, big - 2)
            if p.dst & c.dst and not (p.dst == c.srcc and p.passes == c.passes): n = max(n, big - 2)
        elif isvalu(c.kind):
            if p.dst & (c.src | c.dst): n = max(n, big)
            if p.srcc & c.dst: n = max(n, 7 if p.passes == 8 else 3)
        elif c.kind in ("vmem", "lds"):
            if p.dst & (c.src | c.dst): n = max(n, big)
    elif p.kind == "salu":
        if ("s", 124) in p.dst and c.isdma: n = max(n, 1)
        if (("s", 126) in p.dst or ("s", 127) in p.dst) and isvalu(c.kind) and c.op.startswith(("v_permlane", "v_readlane", "v_readfirstlane")): n = max(n, 2)
    elif p.kind == "vmem" and p.wide:
        if p.ab & c.dst: n = max(n, 2 if isvalu(c.kind) else 1)
    return n

def pad_hazards(items, verbose=False):
    out = []
    hist = []
    pos = 0
    nn = 0
    for it in items:
        if it.kind == "label":
            out.append(it); continue
        req = 0; why = None
        for p, pp in hist[-14:]:
            n = need_states(p, it)
            if n and (pos - pp - 1) < n:
                if n - (pos - pp - 1) > req: req = n - (pos - pp - 1); why = p
        if req:
            if verbose: print("nop %d: [%s] -> [%s]" % (req, why.txt, it.txt))
            out.append(I("s_nop %d" % (req - 1))); pos += req; nn += 1
        out.append(it)
        if it.op == "s_nop":
            pos += int(it.txt.split()[1]) + 1
        else:
            hist.append((it, pos)); pos += 1
    return out, nn

def render(items):
    L = []
    for it in items:
        L.append(it.txt if it.kind == "label" and it.txt.endswith(":") else "    " + it.txt)
    return "\n".join(L) + "\n"

class P:
    def __init__(self): self.items = []
    def __call__(self, txt, tag=None, cost=None):
        for ln in txt.split("\n"):
            if ln.strip(): self.items.append(I(ln, tag, cost))
    def w(self, vm=None, lg=None): self.items.append(W(vm, lg))
    def ext(self, x): self.items.extend(x.items if isinstance(x, P) else x)
    def label(self, n): self.items.append(I(n + ":"))

class Sched:
    def __init__(self, n):
        self.n = n; self.m = [None] * n
        self.gap = [[] for _ in range(n)]; self.pre = [[] for _ in range(n)]; self.cost = [0] * n
    def at(self, g, it, front=False):
        its = it if isinstance(it, list) else [it]
        if front: self.gap[g] = its + self.gap[g]
        else: self.gap[g] += its
        self.cost[g] += sum(i.cost for i in its)
    def before(self, g, it):
        self.pre[g].append(it)
        if g > 0: self.cost[g - 1] += it.cost
    def spread(self, units, lo, hi, look=2):
        n = len(units); last = lo
        tot = float(sum(sum(i.cost for i in u) for u in units)); acc = 0.0
        for u in units:
            c = sum(i.cost for i in u)
            ideal = lo + int((acc + c / 2.0) / tot * (hi - lo + 1)); ideal = min(max(ideal, lo), hi)
            cand = list(range(max(last, ideal - look), min(hi, max(last, ideal + look)) + 1))
            g = min(cand, key=lambda g: (self.cost[g], abs(g - ideal)))
            self.at(g, u); last = g; acc += c
        return last
    def items(self):
        out = []
        for g in range(self.n):
            out += self.pre[g]; out.append(self.m[g]); out += self.gap[g]
        return out

def _fill(self, units, lo, hi, bias=0.5):
    if not units: return lo
    uc = [sum(i.cost for i in u) for u in units]
    tot = float(sum(uc))
    cs = [self.cost[g] for g in range(lo, hi + 1)]
    a, b = 0.0, max(cs) + tot + 1
    for _ in range(60):
        m = (a + b) / 2
        if sum(max(0.0, m - c) for c in cs) < tot: a = m
        else: b = m
    L = b; acc = 0.0; k = 0; last = lo
    for g in range(lo, hi + 1):
        acc += max(0.0, L - cs[g - lo])
        while k < len(units) and (acc >= uc[k] * bias + 1e-9 or g == hi):
            self.at(g, units[k]); acc -= uc[k]; k += 1; last = g
    return last
Sched.fill = _fill
```

```python
import sys, struct
sys.path.insert(0, "work")
from fw import *
from asmlib import build_file, assemble

KN = "gated_mix__ssm_conv_s4__glu_gated_swiglu__prompt_kernel"
HBUF = 0; PART = 0x1400000; YB = 0x2800000; UT = 0x2A80000; FL = 0x2D00000
FL1 = FL; FL1B = FL + 0x10000; FL2 = FL + 0x20000; FLY = FL + 0x30000; FLU = FL + 0x38000; STAMP = FL + 0x40000; WSSIZE = 0x2E00000
OOB = 0x40000000
SPIN = 20000
def f2u(x): return struct.unpack("<I", struct.pack("<f", x))[0]
LOG2E = 1.4426950408889634
def V(i, n=1): return "v%d" % i if n == 1 else "v[%d:%d]" % (i, i + n - 1)
def A(i, n=1): return "a%d" % i if n == 1 else "a[%d:%d]" % (i, i + n - 1)

SX, SW1, SW3, SW2, SOUT, SWS, SDBG = "s[4:7]", "s[8:11]", "s[12:15]", "s[16:19]", "s[20:23]", "s[24:27]", "s[28:31]"
SLOT = 24576; RB = 98304; RW = 16384; B0 = 81920; GATE = RB + 16320
KPITCH = 4864; UCOPY = 4160; FPITCH = 544
sW, sP, sJ, sH, sMT = "s50", "s51", "s52", "s53", "s54"
sT0, sT1, sT2 = "s55", "s56", "s57"
sFcol, sHcol, sSo, sM1, sSo2 = "s58", "s59", "s60", "s61", "s62"
sR = "s63"
sA = ["s64", "s65"]; sB = ["s66", "s67"]; sL2 = "s68"; sC = ["s69", "s70"]; sSAB = "s71"; sSC = ["s72", "s73"]
sM2 = ["s74", "s75"]; sMS = "s76"; sMC = ["s77", "s78"]
sSpin = "s79"
K = {0: "0", 4096: "s80", 8192: "s81", 12288: "s82", 16384: "s83", 73728: "s32", 77824: "s33", 81920: "s34", 36864: "s35", 40960: "s36", 45056: "s37"}
sF1o, sF1p, sF2, sFUs, sFYs, sCh, sUc = "s38", "s39", "s40", "s41", "s42", "s43", "s3"
vH, vHp, vL0, vN, vPart, vYst, vFl, vUst = 40, 41, 42, 43, 44, 45, 46, 47
vXD, vXR, vUR, vUD = 104, 108, 96, 80
vPF, vPF2 = 78, 79
vY, vYS, vFY, vOmg, vF2, vFin, vFinS, vOut, vOutS = 2, 3, 16, 17, 18, 19, 45, 47, 36
vSel1, vSel2, vGaS, vGa, vBlo, vBhi = 4, 8, 12, 128, 248, 252

WS = [24 * j for j in range(35)] + [828 + 24 * k for k in range(7)]
P2W = {27: ("A", 0), 28: ("A", 1), 29: ("SAB", 4), 30: ("B", 0), 31: ("B", 1), 32: ("A", 2), 33: ("B", 2), 34: ("SC", 4),
       35: ("C", 0), 36: ("C", 1), 37: ("C", 2), 38: ("A", 3), 39: ("B", 3), 40: ("C", 3)}
ACC2 = {0: 144, 1: 80, 2: 48, 3: 144, 4: 112}
NSTEP = 972

class G:
    def __init__(self, stamps=False, opts=None):
        self.stamps = stamps; self.nst = 0; self.slow = []; self.o = opts or {}
    def stamp(self, grp="m"):
        if not self.stamps or grp not in self.o.get("grp", "m0"): return []
        k = self.nst; self.nst += 1
        assert k < 8
        return [I("%s s[%d:%d]" % ("s_memtime" if self.o.get("cyc") else "s_memrealtime", 84 + 2 * k, 85 + 2 * k))]

    def dma(self, j):
        sl = (j & 3) * SLOT; tag = "d%d" % j; U = []
        if j < 27:
            if j < 24: st, ss = divmod(j, 6); so = "s_add_u32 %s, %s, 0x%x" % (sSo, sFcol, ss * 96 * 9216 + 128 * st); vb = 2
            else: so = "s_add_u32 %s, %s, 0x%x" % (sSo, sHcol, (j - 24) * 192 * 9216); vb = 5
            U.append([I(so)])
            for m in range(2):
                U.append([I("s_add_u32 m0, %s, 0x%x" % (sM1, sl + m * 12288))])
                for i in range(3):
                    U.append([I("buffer_load_dwordx4 v%d, %s, %s offen offset:%d lds" % (vb + i, (SW1, SW3)[m], sSo, 1024 * i), tag=tag)])
            return U
        ty, k = P2W[j]
        if ty in "ABC":
            sb = {"A": sA, "B": sB, "C": sC}[ty]
            for g, n in ((0, 4), (1, 2)):
                so = sb[g]
                if k: U.append([I("s_add_u32 %s, %s, %d" % (sSo, sb[g], 128 * k))]); so = sSo
                U.append([I("s_add_u32 m0, %s, 0x%x" % (sM2[g], sl))])
                for i in range(n): U.append([I("buffer_load_dwordx4 v%d, %s, %s offen offset:%d lds" % (20 + i, SW2, so, 1024 * i), tag=tag)])
        elif ty == "SAB":
            for g, n in ((0, 4), (1, 2)):
                so = sSAB
                if g: U.append([I("s_add_u32 %s, %s, %d" % (sSo, sSAB, 64 * 1152))]); so = sSo
                U.append([I("s_add_u32 m0, %s, 0x%x" % (sMS, sl + 4096 * g))])
                for i in range(n): U.append([I("buffer_load_dwordx4 v%d, %s, %s offen offset:%d lds" % (24 + i, SW2, so, 1024 * i), tag=tag)])
        else:
            for g, n in ((0, 2), (1, 1)):
                U.append([I("s_add_u32 m0, %s, 0x%x" % (sMC[g], sl))])
                for i in range(n): U.append([I("buffer_load_dwordx4 v%d, %s, %s offen offset:%d lds" % (24 + i, SW2, sSC[g], 1024 * i), tag=tag)])
        return U
    def xdma(self, c):
        U = []
        if c == "u": m = "s_mov_b32 m0, %s" % sR; so = sUc; off = 0; tag = "xu"
        else:
            tag = "x%d" % c
            if c == 0: m = "s_lshl_b32 %s, %s, 12\ns_add_u32 m0, %s, 0x%x" % (sT0, sW, sT0, B0); so = "0"; off = 0
            elif c < 8: m = "s_add_u32 m0, %s, 0x%x" % (sR, (4096 * ((c - 1) & 3) - 128 * c) & 0xffffffff); so = "0"; off = 128 * c
            else: m = "s_add_u32 m0, %s, 0x%x\ns_movk_i32 %s, 1024" % (sR, 12288, sSo2); so = sSo2; off = 0
        U.append([I(x) for x in m.split("\n")])
        for i in range(4): U.append([I("buffer_load_dwordx4 v%d, %s, %s offen offset:%d lds" % (vXD + i, SX, so, 1024 * i + off), tag=tag)])
        return U
    def xdrain(self, c):
        U = []
        for kk in range(2):
            for h in range(2):
                va = vXR + kk + (2 if c == 0 else 0); o = (0 if c == 0 else 4096 * ((c - 1) & 3)) + 2048 * h
                U.append([I("ds_read_b128 %s, v%d offset:%d" % (A(8 * (2 * c + kk) + 4 * h, 4), va, o), tag="xr%d" % c)])
        return U

    def prologue(self):
        p = P()
        p("s_cmp_ge_u32 s2, 256\ns_cbranch_scc1 END")
        for d, off in ((8, 80), (12, 88), (4, 0), (16, 96), (48, 104), (20, 112), (28, 120), (24, 128)):
            p("s_load_dwordx2 s[%d:%d], s[0:1], %d" % (d, d + 1, off))
        p("s_load_dwordx16 s[32:47], s[0:1], 8")
        p.ext(self.stamp("0"))
        p("v_lshrrev_b32 v48, 6, v0\nv_and_b32 v1, 63, v0")
        p("s_and_b32 s51, s2, 7\ns_lshr_b32 s52, s2, 3\ns_and_b32 s53, s52, 1\ns_lshr_b32 s54, s52, 1")
        p("v_readfirstlane_b32 s50, v48")
        for d, n in ((8, 5308416), (12, 5308416), (4, 2359296)):
            p("s_mov_b32 s%d, 0x%x\ns_mov_b32 s%d, 0x20000" % (d + 2, n, d + 3))
        p("v_lshrrev_b32 v49, 3, v1\nv_and_b32 v50, 7, v1\nv_lshrrev_b32 v51, 4, v1")
        p("s_mul_i32 s55, s51, 1152\ns_mul_i32 s56, s53, 640\ns_add_u32 %s, s56, s55" % sFcol)
        p("s_mul_i32 %s, s50, 3072\ns_movk_i32 s57, 9216\ns_mul_i32 s55, s50, 24" % sM1)
        p("v_add_u32 v52, s55, v49\nv_mul_lo_u32 v52, v52, s57\nv_and_b32 v53, 1, v51\nv_lshlrev_b32 v54, 1, v53\nv_xor_b32 v54, v50, v54")
        p("s_and_b32 s55, s50, 1\ns_lshl_b32 s55, s55, 2\nv_xor_b32 v54, s55, v54\nv_lshl_add_u32 v2, v54, 4, v52\nv_xor_b32 v54, 4, v54\nv_lshl_add_u32 v3, v54, 4, v52")
        p("v_add_u32 v3, 0x%x, v3\nv_add_u32 v4, 0x%x, v2" % (8 * 9216 - 1024, 16 * 9216 - 2048))
        p("s_lshl_b32 s55, s54, 7\ns_lshl_b32 s56, s50, 5\ns_add_u32 s55, s55, s56\ns_movk_i32 s57, 1152")
        p("v_add_u32 v52, s55, v49\nv_mul_lo_u32 v52, v52, s57\nv_xor_b32 v54, v50, v51\nv_lshl_add_u32 v%d, v54, 4, v52" % vXD)
        p("v_xor_b32 v54, 4, v54\nv_lshl_add_u32 v%d, v54, 4, v52\nv_add_u32 v%d, %d, v%d" % (vXD + 1, vXD + 1, 8192, vXD + 1))
        p("v_add_u32 v%d, %d, v%d\nv_add_u32 v%d, %d, v%d" % (vXD + 2, 16384, vXD, vXD + 3, 16384, vXD + 1))
        p("s_lshl_b32 %s, s50, 14\ns_add_u32 %s, %s, 0x%x" % (sR, sR, sR, RB))
        p("s_waitcnt lgkmcnt(0)")
        for x in (0, "x0", "x1", 1, "x2", "x3", "x4", 2):
            for u in (self.dma(x) if isinstance(x, int) else self.xdma(int(x[1]))): p.ext(u)
        p.ext(self.stamp("p"))
        for d, n in ((16, 5308416), (20, 2359296), (24, WSSIZE), (28, 256)):
            p("s_mov_b32 s%d, 0x%x\ns_mov_b32 s%d, 0x20000" % (d + 2, n, d + 3))
        if self.o.get("cpf"):
            nl = self.o["cpf"]; per = (nl + 127) // 128
            p("s_getpc_b64 s[80:81]\ns_lshl_b32 s55, s52, 2\ns_add_u32 s55, s55, s50\ns_mul_i32 s55, s55, %d" % per)
            p("v_add_u32 v55, s55, v1\nv_min_u32 v55, %d, v55\nv_lshlrev_b32 v55, 7, v55\ns_mov_b64 exec, %d" % (nl - 1, (1 << per) - 1))
            p("global_load_dword v%d, v55, s[80:81]\ns_mov_b64 exec, -1" % vFl)
        q = P()
        q("s_or_b32 s55, s2, s50\ns_cmp_lg_u32 s55, 0\ns_cbranch_scc1 NONONCE")
        q("s_memrealtime s[56:57]\ns_waitcnt lgkmcnt(0)\ns_or_b32 s56, s56, 1\nv_mov_b32 v%d, s56" % vN)
        q("buffer_store_dword v%d, off, %s, 0 sc1" % (vN, SDBG))
        q.label("NONONCE")
        p.items.append(Ctl("raw", q.items))
        p("s_min_u32 s55, s52, 17\ns_mul_i32 s56, s51, 18\ns_add_u32 s56, s56, s55\ns_lshl_b32 s57, s56, 2\ns_add_u32 s57, s57, s50")
        p("s_lshl_b32 s55, s57, 8\nv_lshl_add_u32 v55, v1, 2, s55\ns_lshl_b32 s55, s57, 1\nv_mov_b32 v56, s55")
        for k in range(6): p("global_load_dword v%d, v55, s[%d:%d]" % (248 + k, 32 + 2 * k, 33 + 2 * k), tag="par")
        p("global_load_ushort v254, v56, s[44:45]", tag="par"); p("global_load_ushort v255, v56, s[46:47]", tag="par")
        p("v_lshlrev_b32 v55, 4, v51")
        for ks in range(18): p("global_load_dwordx4 %s, v55, s[48:49] offset:%d" % (V(176 + 4 * ks, 4), 64 * ks), tag="gw")
        p("s_mov_b32 %s, s57" % sCh)
        p("s_lshl_b32 s56, s56, 2\ns_add_u32 s56, s56, 0x%x\ns_cmp_lt_u32 s2, 144\ns_cselect_b32 %s, s56, 0x%x" % (FLY, sFYs, OOB))
        for k, r in K.items():
            if k: p("s_mov_b32 %s, %d" % (r, k))
        p("s_mov_b32 %s, 0x%x" % (sL2, f2u(-LOG2E)))
        p("v_lshrrev_b32 v59, 2, v1\nv_and_b32 v57, 3, v59\nv_and_b32 v58, 3, v1\nv_and_b32 v60, 15, v1")
        p("v_lshrrev_b32 v61, 1, v60\nv_xor_b32 v61, v51, v61\nv_lshlrev_b32 v61, 4, v61\nv_lshl_add_u32 v61, v60, 7, v61\nv_xor_b32 v62, 64, v61")
        p("s_lshl_b32 s55, s50, 12\ns_add_u32 s55, s55, 0x%x" % B0)
        p("v_add_u32 v%d, %s, v61\nv_add_u32 v%d, %s, v62\nv_add_u32 v%d, s55, v61\nv_add_u32 v%d, s55, v62" % (vXR, sR, vXR + 1, sR, vXR + 2, vXR + 3))
        p("v_lshl_add_u32 v61, v51, 3, v57\nv_lshlrev_b32 v62, 3, v58\nv_lshl_add_u32 v63, v61, 7, v62\nv_lshrrev_b32 v64, 1, v57\nv_lshl_add_u32 v64, v53, 1, v64")
        for q_ in range(4): p("v_xor_b32 v65, %d, v64\nv_lshl_add_u32 v%d, v65, 5, v63\nv_add_u32 v%d, 0x%x, v%d" % (q_, 8 + q_, 12 + q_, 2 * SLOT, 8 + q_))
        p("v_lshl_add_u32 v63, v61, 6, v62")
        for q_ in range(2): p("v_xor_b32 v65, %d, v53\nv_lshl_add_u32 v%d, v65, 5, v63\nv_add_u32 v%d, 0x%x, v%d" % (q_, 16 + q_, 18 + q_, 2 * SLOT, 16 + q_))
        p("s_mul_i32 s55, s51, 1152\ns_lshl_b32 s56, s53, 6\ns_add_u32 s56, s56, s55\ns_add_u32 %s, s56, 512" % sHcol)
        p("s_mul_i32 s55, s50, 48\ns_movk_i32 s57, 9216\nv_add_u32 v63, s55, v59\nv_mul_lo_u32 v63, v63, s57\nv_lshrrev_b32 v64, 5, v1\nv_lshlrev_b32 v64, 1, v64\nv_xor_b32 v64, v58, v64")
        p("v_lshl_add_u32 v5, v64, 4, v63\nv_add_u32 v6, 0x%x, v5\nv_add_u32 v7, 0x%x, v5" % (16 * 9216 - 1024, 32 * 9216 - 2048))
        p("s_movk_i32 s57, 1152\nv_lshlrev_b32 v63, 1, v51\nv_xor_b32 v63, v50, v63\nv_lshlrev_b32 v63, 4, v63\nv_mad_u32_u24 v20, v49, s57, v63")
        for i in (1, 2, 3): p("v_add_u32 v%d, %d, v20" % (20 + i, 8192 * i))
        p("v_lshlrev_b32 v63, 1, v53\nv_xor_b32 v63, v58, v63\nv_lshlrev_b32 v63, 4, v63\nv_mad_u32_u24 v24, v59, s57, v63")
        for i in (1, 2, 3): p("v_add_u32 v%d, %d, v24" % (24 + i, 17408 * i))
        p("v_lshl_add_u32 v63, v59, 7, v62\nv_bfe_u32 v64, v1, 3, 2")
        for q_ in range(4): p("v_xor_b32 v65, %d, v64\nv_lshl_add_u32 v%d, v65, 5, v63\nv_add_u32 v%d, 0x%x, v%d" % (q_, 28 + q_, 32 + q_, 2 * SLOT, 28 + q_))
        p("v_lshl_add_u32 v63, v59, 6, v62")
        for q_ in range(2): p("v_xor_b32 v65, %d, v53\nv_lshl_add_u32 v%d, v65, 5, v63\nv_add_u32 v%d, 0x%x, v%d" % (q_, 36 + q_, 38 + q_, 2 * SLOT, 36 + q_))
        p("s_mul_i32 s55, s51, 663552\ns_mul_i32 s56, s53, 368640\ns_mul_i32 s57, s53, 640\ns_add_u32 s55, s55, s57")
        p("s_add_u32 s44, s55, s56\ns_sub_u32 s45, s55, s56\ns_add_u32 s45, s45, 368640")
        p("s_mul_i32 s56, s53, 36864\ns_add_u32 s55, s55, 294912\ns_add_u32 s46, s55, s56\ns_sub_u32 s47, s55, s56\ns_add_u32 s47, s47, 36864")
        p("s_mul_i32 s55, s50, 36864\ns_mul_i32 s56, s50, 18432\ns_add_u32 s57, s56, 147456")
        p("s_add_u32 %s, s44, s55\ns_add_u32 %s, s44, s57\ns_add_u32 %s, s45, s55\ns_add_u32 %s, s45, s57" % (sA[0], sA[1], sB[0], sB[1]))
        p("s_sub_u32 s60, s45, 73728\ns_sub_u32 s62, s47, 36864\ns_cmp_lt_u32 s50, 2\ns_cselect_b32 s60, s44, s60\ns_cselect_b32 s62, s46, s62")
        p("s_add_u32 s60, s60, s55\ns_add_u32 %s, s60, 221184\ns_add_u32 %s, s62, s56" % (sC[0], sC[1]))
        p("s_mul_i32 s57, s53, 576\ns_sub_u32 s57, 512, s57")
        p("s_add_u32 %s, %s, s57\ns_add_u32 %s, %s, s57" % (sSC[0], sC[0], sSC[1], sC[1]))
        p("s_sub_u32 s60, s45, 221184\ns_cmp_lt_u32 s50, 2\ns_cselect_b32 s60, s44, s60\ns_mul_i32 s55, s50, 110592\ns_add_u32 s60, s60, s55\ns_add_u32 %s, s60, s57" % sSAB)
        p("s_lshl_b32 %s, s50, 12\ns_lshl_b32 %s, s50, 11\ns_add_u32 %s, %s, 16384\ns_mul_i32 %s, s50, 6144" % (sM2[0], sMC[0], sM2[1], sMC[0], sMS))
        p("s_lshl_b32 %s, s50, 10\ns_add_u32 %s, %s, 8192" % (sMC[1], sMC[1], sMC[1]))
        p("s_mul_i32 s55, s50, 18432\ns_mul_i32 s56, s2, 73728\ns_add_u32 s56, s56, s55\nv_lshl_add_u32 v%d, v1, 4, s56" % vH)
        p("s_xor_b32 s57, s2, 8\ns_mul_i32 s56, s57, 73728\ns_add_u32 s56, s56, s55\nv_lshl_add_u32 v%d, v1, 4, s56" % vHp)
        p("s_lshl_b32 s57, s57, 2\ns_add_u32 s57, s57, s50\ns_lshl_b32 s57, s57, 6\ns_add_u32 %s, s57, 0x%x" % (sF1p, FL1))
        p("s_lshl_b32 s57, s2, 2\ns_add_u32 s57, s57, s50\ns_lshl_b32 s57, s57, 6\ns_add_u32 %s, s57, 0x%x" % (sF1o, FL1))
        p("s_mul_i32 s55, s52, 589824\ns_mul_i32 s56, s50, 147456\ns_add_u32 s55, s55, s56\ns_mul_i32 s56, s51, 9216\ns_add_u32 s55, s55, s56\ns_add_u32 s55, s55, 0x%x" % PART)
        p("v_lshl_add_u32 v%d, v1, 4, s55" % vPart)
        p("s_lshl_b32 s55, s52, 2\ns_add_u32 s55, s55, s50\ns_lshl_b32 s55, s55, 7\ns_lshl_b32 s56, s51, 2\ns_add_u32 s55, s55, s56\ns_add_u32 %s, s55, 0x%x" % (sF2, FL2))
        p("v_cmp_eq_u32 vcc, 0, v1\nv_mov_b32 v63, 0x%x\nv_cndmask_b32 v%d, v63, v1, vcc" % (OOB, vL0))
        p("s_lshl_b32 s55, %s, 5\ns_add_u32 s55, s55, 0x%x\ns_cmp_lt_u32 s2, 144\ns_cselect_b32 s55, s55, 0x%x" % (sCh, YB, OOB))
        p("s_movk_i32 s57, 18432\nv_lshl_add_u32 v63, v53, 4, v60\nv_lshrrev_b32 v64, 5, v1\nv_lshl_add_u32 v64, v64, 4, s55\nv_mad_u32_u24 v%d, v63, s57, v64" % vYst)
        p("s_lshl_b32 s55, s51, 1\ns_add_u32 s55, s55, s53\ns_lshl_b32 s56, s55, 7\ns_cmp_lt_u32 s55, 9\ns_cselect_b32 %s, s56, 0x%x" % (sUc, OOB))
        p("s_lshl_b32 s56, s55, 4\ns_add_u32 s56, s56, s54\ns_lshl_b32 s56, s56, 2\ns_add_u32 s56, s56, s50\ns_lshl_b32 s56, s56, 2\ns_add_u32 s56, s56, 0x%x" % FLU)
        p("s_cmp_lt_u32 s55, 9\ns_cselect_b32 %s, s56, 0x%x" % (sFUs, OOB))
        p("s_lshl_b32 s56, s55, 18\ns_lshl_b32 s57, s54, 8\ns_sub_u32 s56, s56, s57\ns_lshl_b32 s57, s50, 6\ns_sub_u32 s56, s56, s57\ns_add_u32 s56, s56, 0x%x" % (UT + 4080))
        p("s_cmp_lt_u32 s55, 9\ns_cselect_b32 s56, s56, 0x%x" % OOB)
        p("v_lshlrev_b32 v63, 4, v51\nv_sub_u32 v63, s56, v63\nv_lshl_add_u32 v%d, v60, 12, v63" % vUst)
        p("v_lshlrev_b32 v63, 3, v51\nv_sub_u32 v63, v63, v57\nv_lshrrev_b32 v64, 1, v58\nv_and_b32 v65, 1, v58\nv_lshl_add_u32 v65, v65, 3, %s" % sR)
        for rd in range(2):
            p("v_add_u32 v66, %d, v63\nv_bfe_u32 v67, v66, 1, 3\nv_xor_b32 v67, v64, v67\nv_lshlrev_b32 v67, 4, v67\nv_lshl_add_u32 v66, v66, 7, v65" % (7 - 4 * rd))
            for cg in range(4): p("v_xor_b32 v68, %d, v67\nv_add_u32 v%d, v68, v66" % (32 * cg, vUR + 2 * cg + rd))
        if self.o.get("pf", 1):
            p("s_mul_i32 s55, s50, 9\nv_add_u32 v63, s55, v1\nv_lshrrev_b32 v64, 1, v63\nv_and_b32 v63, 1, v63\ns_mul_i32 s55, s52, 18\nv_add_u32 v64, s55, v64")
            p("s_movk_i32 s57, 9216\ns_mul_i32 s55, s51, 1152\nv_mul_u32_u24 v63, 640, v63\nv_add_u32 v63, s55, v63\nv_mad_u32_u24 v63, v64, s57, v63")
            p("v_cmp_gt_u32 vcc, 9, v1\nv_mov_b32 v65, 0x%x\nv_cndmask_b32 v%d, v65, v63, vcc" % (OOB, vPF))
        p.ext(self.stamp("p"))
        p.w(vm=["d0", "x1"])
        for c in (0, 1):
            for u in self.xdrain(c): p.ext(u)
        p("s_barrier")
        return p

    def gate(self):
        q = P()
        GA = vXD
        q("s_lshr_b32 s55, s51, 1\ns_cmp_lg_u32 s55, s50\ns_cbranch_scc1 GATE_D\ns_bitcmp1_b32 s51, 0\ns_cbranch_scc1 GATE_1")
        for h in range(2):
            if h: q.label("GATE_1")
            for ks in range(18):
                q("v_mfma_f32_16x16x32_bf16 %s, %s, %s, %s" % (V(GA, 4), V(176 + 4 * ks, 4), A(8 * ks + 4 * h, 4), V(GA, 4) if ks else "0"))
            if not h: q("s_branch GATE_2")
        q.label("GATE_2")
        q("s_nop 7\nv_and_b32 v%d, 15, v1\nv_lshlrev_b32 v%d, 2, v%d" % (GA + 4, GA + 4, GA + 4))
        g = GA
        q("v_cvt_pk_bf16_f32 v%d, v%d, v%d\nv_lshlrev_b32 v%d, 16, v%d\nv_mul_f32 v%d, %s, v%d\nv_exp_f32 v%d, v%d" % (g, g, g, g, g, g, sL2, g, g, g))
        q("s_nop 0\nv_add_f32 v%d, 1.0, v%d\nv_rcp_f32 v%d, v%d\ns_nop 0\nv_cvt_pk_bf16_f32 v%d, v%d, v%d" % (g, g, g, g, g, g, g))
        q("v_add_u32 v%d, 0x%x, v%d\nds_write_b32 v%d, v%d" % (GA + 4, GATE, GA + 4, GA + 4, g))
        q.label("GATE_D")
        return Ctl("raw", q.items)

    def kgen(self, p):
        ZR, ZI, DT = 204, 206, 208
        TA, TB, TC = 210, 214, 218
        FA, FR, FR1 = 108, 109, 110
        E = {e: (44 + 4 * e, 46 + 4 * e) for e in range(1, 8)}
        W8c = (76, 78); W128 = (80, 82)
        Dp = [(84, 86), (88, 90)]; Gp = [(92, 94), (96, 98)]; Rr = [(100, 102), (104, 106)]
        KD = 234
        def cm(Z, X, Y, t):
            return ["v_pk_mul_f32 %s, %s, %s" % (V(t, 2), V(X[1], 2), V(Y[1], 2)),
                    "v_pk_mul_f32 %s, %s, %s" % (V(t + 2, 2), V(X[0], 2), V(Y[1], 2)),
                    "v_pk_fma_f32 %s, %s, %s, %s neg_lo:[0,0,1] neg_hi:[0,0,1]" % (V(Z[0], 2), V(X[0], 2), V(Y[0], 2), V(t, 2)),
                    "v_pk_fma_f32 %s, %s, %s, %s" % (V(Z[1], 2), V(X[1], 2), V(Y[0], 2), V(t + 2, 2))]
        cnt = {}
        def put(row, Z, ob):
            o = ob + 2 * (cnt.get(ob, 0) % 2); cnt[ob] = cnt.get(ob, 0) + 1
            return ["v_cvt_pk_bf16_f32 v%d, v%d, v%d" % (o, Z[0], Z[1]), "v_cvt_pk_bf16_f32 v%d, v%d, v%d" % (o + 1, Z[0] + 1, Z[1] + 1),
                    "ds_write_b64 v%d, %s offset:%d" % (FA, V(o, 2), row * FPITCH)]
        def inter(*ls):
            out = []; tot = max(len(l) for l in ls); idx = [0] * len(ls)
            for s in range(1, tot + 1):
                for i, l in enumerate(ls):
                    while idx[i] < len(l) and idx[i] * tot < s * len(l): out.append(l[idx[i]]); idx[i] += 1
            return out
        p("s_lshr_b32 s55, %s, 6\ns_lshl_b32 s55, s55, 8\ns_add_u32 s55, s55, 0x%x\nv_lshl_add_u32 v111, v1, 2, s55" % (sCh, FLU))
        ldfu = "buffer_load_dword v%d, v111, %s, 0 offen sc1" % (vFl, SWS)
        p(ldfu)
        p("v_lshl_add_u32 v%d, v1, 3, %s" % (FA, sR))
        p("v_and_b32 v84, 15, v1\nv_mul_u32_u24 v85, %d, v84\nv_lshrrev_b32 v86, 4, v1\nv_lshl_add_u32 v85, v86, 4, v85\nv_add_u32 v%d, %s, v85" % (FPITCH, FR, sR))
        p("v_cmp_lt_u32 vcc, 13, v84\nv_add_u32 v85, %d, v%d\nv_subrev_u32 v86, %d, v%d\nv_cndmask_b32 v%d, v85, v86, vcc" % (16 * FPITCH, FR, 14 * FPITCH, FR, FR1))
        for k in range(6):
            p("v_lshlrev_b32 v%d, 16, v%d\nv_and_b32 v%d, 0xffff0000, v%d" % (192 + 2 * k, 248 + k, 193 + 2 * k, 248 + k))
        p("v_lshlrev_b32 v254, 16, v254\nv_mul_f32 v254, 0x%x, v254\nv_exp_f32 v254, v254\nv_lshlrev_b32 v255, 16, v255\nv_cvt_pk_bf16_f32 v254, v254, v254" % f2u(LOG2E))
        p("v_lshlrev_b32 v%d, 16, v254\nv_lshlrev_b32 v%d, 16, v254" % (DT, DT + 1))
        p("v_pk_mul_f32 %s, %s, %s\nv_pk_mul_f32 %s, %s, %s" % (V(ZR, 2), V(192, 2), V(DT, 2), V(ZI, 2), V(194, 2), V(DT, 2)))
        p("v_pk_mul_f32 %s, %s, %s\nv_pk_mul_f32 %s, %s, %s" % (V(196, 2), V(196, 2), V(DT, 2), V(198, 2), V(198, 2), V(DT, 2)))
        for x in cm(Dp[0], (200, 202), (196, 198), TC): p(x)
        for n_, (s, Wd, conj) in enumerate(((8, W8c, True), (128, W128, False), (1024, Gp[0], False), (1, E[1], False))):
            T0 = (TA, TB)[n_ & 1]; T1 = T0 + 2
            for h in range(2):
                p("v_mul_f32 v%d, 0x%x, v%d" % (T0 + h, f2u(s * LOG2E), ZR + h))
                p("v_mul_f32 v%d, 0x%x, v%d" % (T1 + h, f2u((-s if conj else s) / (2 * 3.141592653589793)), ZI + h))
            for h in range(2): p("v_exp_f32 v%d, v%d\nv_fract_f32 v%d, v%d" % (T0 + h, T0 + h, T1 + h, T1 + h))
            for h in range(2): p("v_cos_f32 v%d, v%d\nv_sin_f32 v%d, v%d" % (Wd[0] + h, T1 + h, Wd[1] + h, T1 + h))
            if n_ == 0: p("v_pk_mul_f32 %s, %s, -1.0 op_sel_hi:[1,0]" % (V(Dp[0][1], 2), V(Dp[0][1], 2)))
            p("v_pk_mul_f32 %s, %s, %s\nv_pk_mul_f32 %s, %s, %s" % (V(Wd[0], 2), V(Wd[0], 2), V(T0, 2), V(Wd[1], 2), V(Wd[1], 2), V(T0, 2)))
        p("s_waitcnt vmcnt(0)")
        p.ext(self.check("fu", vFl, ldfu))
        p("s_lshl_b32 s55, %s, 12\ns_add_u32 s55, s55, 0x%x\nv_lshl_add_u32 v111, v1, 4, s55" % (sCh, UT))
        for k in range(4): p("buffer_load_dwordx4 %s, v111, %s, 0 offen offset:%d sc1" % (V(192 + 4 * k, 4), SWS, 1024 * k))
        c1 = put(0, Dp[0], 222)
        for b in range(1, 16): c1 += cm(Dp[b & 1], Dp[(b - 1) & 1], W8c, TA) + put(b, Dp[b & 1], 222)
        c2 = put(16, Gp[0], 226)
        for a in range(1, 9): c2 += cm(Gp[a & 1], Gp[(a - 1) & 1], W128, TB) + put(16 + a, Gp[a & 1], 226)
        c3 = []
        for e, (x, y) in ((2, (1, 1)), (3, (2, 1)), (4, (2, 2)), (5, (4, 1)), (6, (4, 2)), (7, (4, 3))): c3 += cm(E[e], E[x], E[y], TC)
        for x in inter(c1, c2, c3): p(x)
        for s in range(8): p("ds_read_b128 %s, v%d offset:%d" % (A(192 + 4 * s, 4), FR, 64 * s), tag="kb%d" % s)
        for s in range(8): p("ds_read_b128 %s, v%d offset:%d" % (A(224 + 4 * s, 4), FR, 16 * FPITCH + 64 * s), tag="k2_%d" % s)
        def mm(t, tg):
            L = []
            for s in range(8):
                if s % 4 == 0: L.append(W(lg=["kb7", "%s%d" % (tg, s + 3)]))
                L.append(I("v_mfma_f32_16x16x32_bf16 %s, %s, %s, %s" % (V(KD + 4 * t, 4), A(224 + 4 * s, 4), A(192 + 4 * s, 4), "0" if s == 0 else V(KD + 4 * t, 4))))
            return L
        d1 = ["v_mov_b32 v230, 0x3f80", "v_mov_b32 v231, 0x3f80", "ds_write_b64 v%d, v[230:231]" % FA]
        for e in range(1, 8): d1 += put(e, E[e], 222)
        d1 += put(8, W128, 222)
        for e in range(1, 8): d1 += cm(Rr[e & 1], E[e], W128, TA) + put(8 + e, Rr[e & 1], 222)
        d2 = []; prev = W128; k = 0; late = []
        for a in range(2, 8):
            cur = Gp[a & 1]
            base = 4 * (a - 2) if a < 4 else 8 + 2 * (a - 4)
            es = (2, 4, 6) if a < 4 else (4,)
            if a < 7:
                d2 += cm(cur, prev, W128, TB) + put(16 + base, cur, 226)
                for i_, e in enumerate(es):
                    d2 += cm(Dp[k & 1], cur, E[e], TB) + put(16 + base + 1 + i_, Dp[k & 1], 226); k += 1
            else:
                d2 += cm(cur, prev, W128, TB) + cm(Dp[k & 1], cur, E[4], TB)
                late = put(0, cur, 226) + put(1, Dp[k & 1], 226)
            prev = cur
        seq = inter(d1, d2)
        for x in seq[:24]: p(x)
        p.ext(mm(2, "k2_"))
        for x in seq[24:]: p(x)
        for s in range(8): p("ds_read_b128 %s, v%d offset:%d" % (A(224 + 4 * s, 4), FR, 64 * s), tag="k0_%d" % s)
        for x in late: p(x)
        for s in range(8): p("ds_read_b128 %s, v%d offset:%d" % (V(48 + 4 * s, 4), FR1, 64 * s), tag="k1_%d" % s)
        p.ext(mm(0, "k0_"))
        for it in mm(1, "k1_"):
            if isinstance(it, I):
                s = int(re.search(r"a\[(\d+):", it.txt).group(1))
                it = I(it.txt.replace(A(s, 4), V(48 + s - 224, 4), 1))
            p.items.append(it)
        return KD

    def ucopy(self, p):
        p("v_lshl_add_u32 v80, v1, 4, %s" % sR)
        for k in range(4): p("v_mov_b32 v%d, 0" % (84 + k))
        p("v_bfe_u32 v81, v1, 1, 1\nv_mul_u32_u24 v81, %d, v81\nv_and_b32 v82, 1, v1\nv_lshl_add_u32 v81, v82, 4, v81\nv_add_u32 v81, %s, v81" % (UCOPY, sR))
        p("ds_write_b128 v81, v[84:87] offset:%d" % (KPITCH + 4096))
        p("ds_write_b128 v80, v[84:87]")
        p("s_waitcnt vmcnt(0)")
        for k in range(4): p("ds_write_b128 v80, %s offset:%d" % (V(192 + 4 * k, 4), KPITCH + UCOPY + 1024 * k))
        for k in range(4): p("ds_read_b32 v%d, v80 offset:%d" % (208 + k, KPITCH + UCOPY + 1024 * k + 16), tag="un%d" % k)
    def ucopy2(self, p):
        for k in range(4):
            p.w(lg="un%d" % k)
            o = 212 + 4 * (k & 1)
            for i in range(4): p("v_alignbit_b32 v%d, v%d, v%d, 16" % (o + i, 192 + 4 * k + i + 1 if i < 3 else 208 + k, 192 + 4 * k + i))
            p("ds_write_b128 v80, %s offset:%d" % (V(o, 4), KPITCH + 1024 * k))

    def kexpand(self, p, KD):
        b = 88
        a0, a1, a2, a3 = 81, 82, 83, 88
        p("v_and_b32 v%d, 15, v1\nv_lshrrev_b32 v%d, 4, v1\nv_lshl_add_u32 v%d, v%d, 4, %s" % (a0, a1, a0, a0, sR))
        p("v_lshl_add_u32 v%d, v%d, 10, v%d\nv_add_u32 v%d, %d, v%d" % (a2, a1, a0, a2, 472 + 2048, a2))
        for r in range(4):
            p("v_cvt_pk_bf16_f32 v%d, v%d, v%d\nv_cvt_pk_bf16_f32 v%d, v%d, v%d" % (90 + 2 * r, KD + 8 + r, KD + 8 + r, 91 + 2 * r, KD + 8 + r, KD + 8 + r))
        p("s_mov_b32 exec_hi, 1")
        for r in range(4):
            p("ds_write2_b64 v%d, %s, %s offset0:%d offset1:%d" % (a2, V(90 + 2 * r, 2), V(90 + 2 * r, 2), 32 * r, 32 * r + 1))
            if r == 0: p("s_mov_b32 exec_hi, 0")
        p("s_mov_b32 exec_lo, 0x55555555")
        for r in range(4): p("ds_write_b16 v%d, v%d offset:%d" % (a2, 90 + 2 * r, 256 * r + 16))
        p("s_mov_b64 exec, 1\nv_add_f32 v%d, v%d, v255\ns_mov_b64 exec, -1" % (KD, KD))
        p("v_lshrrev_b32 v%d, 1, v%d\nv_lshl_add_u32 v%d, v%d, 8, v%d\nv_and_b32 v%d, 1, v%d\nv_lshl_add_u32 v%d, v%d, 3, v%d" % (a2, a1, a2, a2, a0, a3, a1, a2, a3, a2))
        p("v_cvt_pk_bf16_f32 v98, v%d, v%d\nv_cvt_pk_bf16_f32 v99, v%d, v%d" % (KD, KD + 1, KD + 2, KD + 3))
        p("ds_write_b64 v%d, v[98:99] offset:480" % a2)
        p("v_lshl_add_u32 v%d, v%d, 9, v%d\nv_add_u32 v%d, 476, v%d" % (a2, a1, a0, a2, a2))
        for h in range(2):
            k0, k4 = KD + 4 + 2 * h, KD + 5 + 2 * h; o = 100 + 4 * h
            p("v_cvt_pk_bf16_f32 v%d, v%d, v%d\nv_cvt_pk_bf16_f32 v%d, v%d, v%d\nv_cvt_pk_bf16_f32 v%d, v%d, v%d" % (o, k0, k0, o + 1, k0, k4, o + 2, k4, k4))
        p("v_lshl_add_u32 v%d, v%d, 8, v%d\nv_add_u32 v%d, %d, v%d" % (a3, a1, a0, a3, 478 + 512, a3))
        k = KD + 4
        p("v_cvt_pk_bf16_f32 v108, v%d, v%d\nv_cvt_pk_bf16_f32 v109, v%d, v%d\nv_cvt_pk_bf16_f32 v110, v%d, v%d\nv_cvt_pk_bf16_f32 v111, v%d, v%d" % (k, k, k + 1, k + 2, k + 2, k + 2, k + 3, k + 3))
        p("s_mov_b32 exec_lo, 0")
        for h in range(2):
            o = 100 + 4 * h
            p("ds_write_b96 v%d, %s offset:%d\nds_write_b32 v%d, v%d offset:%d" % (a2, V(o, 3), 256 * h + 4, a2, o, 256 * h))
        p("s_mov_b32 exec_lo, -1\ns_mov_b32 exec_hi, 0")
        p("ds_write_b96 v%d, v[108:110] offset:2\nds_write_b16 v%d, v111 offset:14\nds_write_b16 v%d, v108" % (a3, a3, a3))
        p("s_mov_b64 exec, -1")

    def conv(self, p):
        p("v_and_b32 v81, 15, v1\nv_lshrrev_b32 v82, 4, v1\nv_lshlrev_b32 v83, 4, v82")
        p("v_lshl_add_u32 v80, v81, 5, v83\nv_add_u32 v80, %s, v80" % sR)
        p("v_and_b32 v84, 1, v81\nv_mul_u32_u24 v84, %d, v84\nv_and_b32 v81, 14, v81\nv_lshlrev_b32 v81, 1, v81\nv_sub_u32 v81, v84, v81\nv_add_u32 v81, v83, v81" % UCOPY)
        p("s_add_u32 s55, %s, %d\nv_add_u32 v81, s55, v81" % (sR, KPITCH + 4092 - 32 - 448 - 512))
        for k in (1, 2, 3): p("v_subrev_u32 v%d, %d, v81" % (81 + k, 1024 * k))
        ACC = 48; R = [A, V]
        pairs = sorted([(a, c) for a in range(8) for c in range(8 - a)], key=lambda x: (max(x), x[0] + x[1]))
        def rd(b):
            U = []; r = R[b & 1]
            for i in range(8):
                o = 128 * (1 - (i & 1)) + 16 * b
                U.append([I("ds_read2_b32 %s, v%d offset0:%d offset1:%d" % (r(192 + 4 * i, 2), 81 + (i >> 1), o, o + 1), tag="ca%d_%d" % (b, i))])
                U.append([I("ds_read2_b32 %s, v%d offset0:%d offset1:%d" % (r(192 + 4 * i + 2, 2), 81 + (i >> 1), o + 2, o + 3), tag="ca%d_%d" % (b, i))])
                U.append([I("ds_read_b128 %s, v80 offset:%d" % (r(224 + 4 * i, 4), 512 * i + 64 * b), tag="cb%d_%d" % (b, i))])
            return U
        for u in rd(0): p.ext(u)
        S = Sched(288); seen = set()
        for b in range(8):
            r = R[b & 1]
            for k, (a, c) in enumerate(pairs):
                g = 36 * b + k; T = a + c
                S.m[g] = I("v_mfma_f32_16x16x32_bf16 %s, %s, %s, %s" % (V(ACC + 4 * T, 4), r(192 + 4 * a, 4), r(224 + 4 * c, 4), V(ACC + 4 * T, 4) if T in seen else "0"))
                seen.add(T)
                mx = max(a, c)
                if k == 0 or max(pairs[k - 1]) != mx: S.before(g, W(lg=["ca%d_%d" % (b, mx), "cb%d_%d" % (b, mx)]))
            if b < 7: S.spread(rd(b + 1), 36 * b + 6, 36 * b + 33, look=0)
        p.ext(S.items())
        p("s_nop 4")
        for T in range(8):
            p("v_cvt_pk_bf16_f32 v%d, v%d, v%d\nv_cvt_pk_bf16_f32 v%d, v%d, v%d" % (96 + 2 * T, 48 + 4 * T, 49 + 4 * T, 97 + 2 * T, 50 + 4 * T, 51 + 4 * T))
        for T in range(0, 8, 2):
            p("v_permlane16_swap_b32 v%d, v%d\nv_permlane16_swap_b32 v%d, v%d" % (96 + 2 * T, 98 + 2 * T, 97 + 2 * T, 99 + 2 * T))

    def convblock(self):
        p = P()
        p("s_cmp_ge_u32 s2, 144\ns_cbranch_scc1 NOCONV")
        p.ext(self.stamp("c"))
        KD = self.kgen(p)
        p.ext(self.stamp("c"))
        self.ucopy(p); self.kexpand(p, KD); self.ucopy2(p)
        p.ext(self.stamp("c"))
        self.conv(p)
        p.ext(self.stamp("c"))
        p("s_waitcnt lgkmcnt(0)")
        p.label("NOCONV")
        return Ctl("raw", resolve_waits(p.items))

    def check(self, name, vflag, load):
        k = len(self.slow)
        cmpi = "v_cmp_ne_u32 vcc, v%d, v%d" % (vflag, vN) if name != "nonce" else "v_cmp_eq_u32 vcc, 0, v%d" % vN
        sl = P()
        sl.label("SLOW%d" % k); sl("s_mov_b32 %s, %d" % (sSpin, SPIN)); sl.label("SLOWL%d" % k)
        sl(load); sl("s_waitcnt vmcnt(0)"); sl(cmpi); sl("s_cbranch_vccz BACK%d" % k)
        sl("s_sub_u32 %s, %s, 1\ns_cmp_lg_u32 %s, 0\ns_cbranch_scc1 SLOWL%d\ns_branch BACK%d" % (sSpin, sSpin, sSpin, k, k))
        self.slow.append(sl)
        return [I(cmpi), I("s_cbranch_vccnz SLOW%d" % k), I("BACK%d:" % k)]

    def fin_loads(self, k, dst):
        U = []
        for t in range(2):
            for sg in range(2):
                U.append([I("buffer_load_dwordx4 %s, v%d, %s, %s offen offset:%d sc1" % (A(dst + 8 * t + 4 * sg, 4), vFinS if k == 4 else vFin, SWS,
                                                                                         K[36864 * t + 4096 * (k >> 1)], 256 * sg + 2048 * (k & 1)), tag="fl%d" % k)])
        return U
    def fin_mm(self, k, src, acc):
        L = []
        for i in range(4):
            L.append(I("v_mfma_f32_16x16x32_bf16 %s, %s, %s, %s" % (V(acc, 4), V(vSel2 if i & 1 else vSel1, 4), A(src + 4 * i, 4), V(acc, 4) if i else "0")))
        return L
    def fin_out(self, k, acc):
        ga = vGaS if k == 4 else vGa + 4 * k; L = []
        for r in range(4): L.append(I("v_fma_f32 v%d, v%d, v%d, v%d" % (acc + r, acc + r, vOmg, ga + r)))
        L.append(I("v_cvt_pk_bf16_f32 v%d, v%d, v%d" % (acc, acc, acc + 1))); L.append(I("v_cvt_pk_bf16_f32 v%d, v%d, v%d" % (acc + 1, acc + 2, acc + 3)))
        L.append(I("buffer_store_dwordx2 %s, v%d, %s, 0 offen offset:%d" % (V(acc, 2), vOutS if k == 4 else vOut, SOUT, 0 if k == 4 else 128 * k)))
        return L
    def fin_setup(self):
        p = P()
        p("v_and_b32 v48, 15, v1\nv_lshrrev_b32 v49, 4, v1\nv_lshlrev_b32 v50, 2, v48\nv_add_u32 v50, 0x%x, v50" % GATE)
        p("ds_read_b32 v51, v50", tag="gate")
        p("s_and_b32 s44, s50, 1\ns_lshr_b32 s45, s50, 1\ns_cmp_eq_u32 s44, 0\ns_cselect_b32 s46, 0, 0x%x" % OOB)
        p("v_lshrrev_b32 v52, 2, v1\ns_mul_i32 s55, s53, 80\ns_lshl_b32 s56, s44, 3\ns_add_u32 s55, s55, s56\nv_lshl_add_u32 v53, v52, 4, s55")
        p("s_lshl_b32 s55, s53, 3\ns_add_u32 s55, s55, 64\nv_mov_b32 v54, s55\nv_cmp_gt_u32 vcc, 4, v52\nv_cndmask_b32 v53, v54, v53, vcc")
        p("v_and_b32 v52, 1, v1\nv_lshl_add_u32 v53, v52, 2, v53\nv_bfe_u32 v52, v1, 1, 1\nv_add_u32 v53, v52, v53\ns_lshl_b32 s55, s45, 3\ns_add_u32 s55, s55, 0x%x\nv_lshl_add_u32 v%d, v53, 2, s55" % (FLY, vFY))
        n1 = len(p.items)
        p("v_bfe_u32 v52, v1, 2, 1\nv_bfe_u32 v53, v1, 3, 1\nv_and_b32 v54, 3, v1\nv_lshl_add_u32 v54, v53, 2, v54\nv_lshl_add_u32 v54, v52, 4, v54")
        p("v_and_b32 v55, 1, v49\nv_lshlrev_b32 v56, 4, v55\nv_lshl_add_u32 v54, v54, 5, v56")
        p("s_lshl_b32 s55, s54, 3\ns_add_u32 s55, s55, s51\ns_mul_i32 s55, s55, 18432\ns_lshl_b32 s56, s45, 8\ns_add_u32 s55, s55, s56\ns_add_u32 s55, s55, 0x%x" % YB)
        p("s_mul_i32 s56, s53, 10240\ns_lshl_b32 s57, s44, 10\ns_add_u32 s56, s56, s57\ns_add_u32 s56, s56, s55")
        p("v_lshrrev_b32 v56, 5, v1\nv_lshl_add_u32 v57, v56, 11, v54\nv_add_u32 v%d, s56, v57" % vY)
        p("s_lshl_b32 s56, s53, 10\ns_add_u32 s56, s56, s55\ns_add_u32 s56, s56, 8192\ns_add_u32 s56, s56, s46\nv_lshl_add_u32 v57, v56, 30, v54\nv_add_u32 v%d, s56, v57" % vYS)
        n2 = len(p.items)
        p("v_and_b32 v52, 1, v1\nv_lshlrev_b32 v52, 4, v52\nv_mov_b32 v57, 0xffff\nv_lshlrev_b32 v52, v52, v57\nv_bfe_u32 v57, v1, 1, 2")
        for r in range(4): p("v_cmp_eq_u32 vcc, %d, v57\nv_cndmask_b32 v%d, 0, v52, vcc" % (r, 58 + r))
        p("v_mov_b32 v57, 0x3f803f80\nv_cmp_eq_u32 vcc, 0, v53\nv_cndmask_b32 v62, 0, v57, vcc\nv_xor_b32 v63, v57, v62")
        for r in range(4): p("v_and_b32 v%d, v%d, v62\nv_and_b32 v%d, v%d, v63" % (vSel1 + r, 58 + r, vSel2 + r, 58 + r))
        p.w(lg="gate")
        p("v_cmp_eq_u32 vcc, v49, v53\nv_cndmask_b32 v62, 0, v51, vcc\nv_add_u32 v53, 2, v53\nv_cmp_eq_u32 vcc, v49, v53\nv_cndmask_b32 v63, 0, v51, vcc")
        for r in range(4): p("v_and_b32 v%d, v%d, v62\nv_and_b32 v%d, v%d, v63" % (vBlo + r, 58 + r, vBhi + r, 58 + r))
        p("v_and_b32 v51, 0xffff0000, v51\nv_sub_f32 v51, 1.0, v51\nv_cvt_pk_bf16_f32 v51, v51, v51\nv_lshlrev_b32 v%d, 16, v51" % vOmg)
        n3 = len(p.items)
        p("s_mul_i32 s55, s52, 589824\ns_mul_i32 s56, s51, 73728\ns_add_u32 s55, s55, s56\ns_lshl_b32 s56, s45, 9\ns_add_u32 s55, s55, s56\ns_add_u32 s55, s55, 0x%x" % PART)
        p("s_movk_i32 s57, 9216\nv_lshl_add_u32 v52, v48, 4, s55\nv_mad_u32_u24 v52, v49, s57, v52\ns_lshl_b32 s56, s44, 10\nv_add_u32 v%d, s56, v52\nv_add_u32 v%d, s46, v52" % (vFin, vFinS))
        p("s_lshl_b32 s55, s54, 7\ns_lshl_b32 s56, s51, 4\ns_add_u32 s55, s55, s56\ns_mul_i32 s55, s55, 1152\ns_lshl_b32 s56, s45, 4\ns_add_u32 s55, s55, s56")
        p("s_movk_i32 s57, 1152\nv_lshlrev_b32 v52, 3, v56\nv_lshl_add_u32 v52, v55, 5, v52\nv_mad_u32_u24 v52, v48, s57, v52")
        p("s_mul_i32 s56, s53, 640\ns_lshl_b32 s57, s44, 6\ns_add_u32 s56, s56, s57\ns_add_u32 s56, s56, s55\nv_add_u32 v%d, s56, v52" % vOut)
        p("s_lshl_b32 s56, s53, 6\ns_add_u32 s56, s56, s55\ns_add_u32 s56, s56, 512\ns_add_u32 s56, s56, s46\nv_add_u32 v%d, s56, v52" % vOutS)
        p("s_lshl_b32 s55, s52, 2\ns_lshr_b32 s56, s51, 1\ns_add_u32 s55, s55, s56\ns_lshl_b32 s55, s55, 7\ns_add_u32 s55, s55, 0x%x\nv_and_b32 v52, 7, v1\nv_lshl_add_u32 v%d, v52, 2, s55" % (FL2, vF2))
        U = []; cur = []
        for it in p.items:
            cur.append(it)
            if isinstance(it, I) and (it.op.startswith("s_cmp") or it.op.startswith("v_cmp")): continue
            U.append(cur); cur = []
        def cut(n):
            c = 0
            for i, u in enumerate(U):
                c += len(u)
                if c >= n: return i + 1
        a, b, c = cut(n1), cut(n2), cut(n3)
        return U[:a], U[a:b], U[b:c], U[c:]

    def gemm(self):
        N = 2 * NSTEP; PREF = 8; NB = 12
        S = Sched(N); reads = [None] * NSTEP
        def hsrc(ty, kk, h):
            if ty == "SAB": ty, kk = ("A", kk) if kk < 6 else ("B", kk - 6)
            if ty == "A": return V(176 + 8 * kk + 4 * h, 4)
            if ty == "B": return A(192 + 8 * kk + 4 * h, 4)
            if kk < 2: return V(224 + 8 * kk + 4 * h, 4)
            if kk < 4: return A(240 + 8 * (kk - 2) + 4 * h, 4)
            return V(240 + 4 * h, 4) if kk == 4 else A(4 * h, 4)
        for j in range(41):
            hi = (j & 3) >= 2; so = (j & 1) * SLOT
            for i in range(WS[j + 1] - WS[j]):
                s = WS[j] + i; m = i & 1
                if j < 24:
                    ss = j % 6; q, kk = i // 6, (i % 6) // 2; ks = 3 * ss + kk
                    acc = lambda h: 112 + 16 * q + 8 * m + 4 * h; B = lambda h: A(8 * ks + 4 * h, 4); first = ks == 0
                    va = 8 + q + 4 * hi; o = so + m * 12288 + kk * 4096; o2 = o + 512
                elif j < 27:
                    q, kk = i // 12, (i % 12) // 2; ks = 6 * (j - 24) + kk
                    acc = lambda h: 112 + 16 * q + 8 * m + 4 * h; B = lambda h: A(8 * ks + 4 * h, 4); first = ks == 0
                    va = 16 + q + 2 * hi; o = so + m * 12288 + kk * 2048; o2 = o + 256
                else:
                    ty, k = P2W[j]
                    if k < 4: a, kk = i // 12, (i % 12) // 2; va = 28 + 2 * a + m + 4 * hi; o = so + kk * 4096; o2 = o + 2048
                    else: a, kk = 0, i // 2; va = 36 + m + 2 * hi; o = so + kk * 2048; o2 = o + 1024
                    acc = lambda h: ACC2[k] + 16 * a + 8 * h + 4 * m; B = lambda h: hsrc(ty, kk, h); first = (ty in ("A", "SAB") and kk == 0)
                fb = 144 + 4 * (s % NB)
                for h in range(2):
                    S.m[2 * s + (h if m == 0 else 1 - h)] = I("v_mfma_f32_16x16x32_bf16 %s, %s, %s, %s" % (V(acc(h), 4), A(fb, 4), B(h), "0" if first else V(acc(h), 4)))
                reads[s] = [I("ds_read_b64_tr_b16 %s, v%d offset:%d" % (A(fb, 2), va, o)), I("ds_read_b64_tr_b16 %s, v%d offset:%d" % (A(fb + 2, 2), va, o2), tag="r%d" % s)]
        pre = P()
        for s in range(PREF): pre.ext(reads[s])
        pre.w(lg="xr1")
        for u in self.xdma(5): pre.ext(u)
        for s in range(PREF, NSTEP):
            S.at(2 * (s - PREF), reads[s][0]); S.at(2 * (s - PREF) + 1, reads[s][1])
        for s in range(0, NSTEP, 4): S.before(2 * s, W(lg="r%d" % (s + 3)))
        G_ = lambda s: 2 * s
        bar = {j: WS[j] + (2 if j == 34 else 8) for j in range(41)}
        def even(U, lo, hi):
            n = len(U); lo, hi = G_(lo), G_(hi)
            for k, u in enumerate(U): S.at(lo + (k * (hi - lo)) // n, u)
        flag = lambda so, off=0: I("buffer_store_dword v%d, v%d, %s, %s offen offset:%d sc1" % (vN, vL0, SWS, so, off))
        barx = {13: ["yst"]}
        for j in range(40):
            S.at(G_(bar[j]), [W(vm=["d%d" % (j + 1)] + barx.get(j, [])), I("s_barrier")])
        def seq(U, lo, hi): return S.fill(U, G_(lo), G_(hi))
        seq([[W(vm="x2")]] + self.xdrain(2), 10, 13)
        seq(self.xdrain(3) + self.xdrain(4), 33, 38)
        seq([[W(vm="x5")]] + self.xdrain(5), 58, 61)
        seq([[W(vm="x6")]] + self.xdrain(6), 82, 85); seq([[W(vm="x7")]] + self.xdrain(7), 88, 91)
        seq([[W(vm="x8")]] + self.xdrain(8), 100, 103)
        S.before(G_(24), W(lg="xr2")); S.before(G_(48), W(lg="xr4")); S.before(G_(72), W(lg="xr5")); S.before(G_(96), W(lg="xr7")); S.before(G_(120), W(lg="xr8"))
        ldn = "buffer_load_dword v%d, off, %s, 0 sc1" % (vN, SDBG)
        S.at(G_(74), [I(ldn, tag="nonce")])
        S.at(G_(112), [W(vm="nonce")] + self.check("nonce", vN, ldn))
        U = [[W(vm="xu")]]
        for cg in range(4):
            for rd in range(2): U.append([I("ds_read_b64_tr_b16 %s, v%d" % (V(vUD + 4 * cg + 2 * rd, 2), vUR + 2 * cg + rd), tag="ur")])
        seq(U, 106, 111)
        U = [[W(lg="ur")]]
        for cg in range(4):
            if cg: U.append([I("s_mov_b32 %s, %d" % (sSo2, 65536 * cg))])
            U.append([I("buffer_store_dwordx4 %s, v%d, %s, %s offen sc1" % (V(vUD + 4 * cg, 4), vUst, SWS, sSo2 if cg else "0"), tag="ust")])
        seq(U, 114, 121)
        S.at(G_(160), [W(vm="ust"), flag(sFUs)])
        S.before(G_(144), W(vm=["gw", "par"])); S.before(G_(144), self.gate())
        if self.o.get("pf", 1):
            for st, s in ((1, 28), (2, 150), (3, 294), (4, 420)):
                S.at(G_(s), [I("buffer_load_dword v%d, v%d, %s, 0 offen offset:%d" % (vFl, vPF if st == 1 else 39 + 0 * st, SW1, 128 * st))] if False else
                           [I("buffer_load_dword v%d, v%d, %s, 0 offen offset:%d" % (vFl, vPF, SW1, 128 * st))])
                S.at(G_(s) + 2, [I("buffer_load_dword v%d, v%d, %s, 0 offen offset:%d" % (vFl, vPF, SW3, 128 * st))])
                break
        S.before(G_(264), self.convblock())
        U = []
        for t in range(4):
            if t: U.append([I("s_mov_b32 %s, %d" % (sSo2, 589824 * t))])
            U.append([I("buffer_store_dwordx4 %s, v%d, %s, %s offen sc1" % (V(96 + 4 * t, 4), vYst, SWS, sSo2 if t else "0"), tag="yst")])
        seq(U, 264, 270)
        S.at(G_(bar[13]) + 1, [flag(sFYs)])
        ld1 = "buffer_load_dword v%d, off, %s, %s sc1" % (vFl, SWS, sF1p)
        hld = lambda s: [I("buffer_load_dwordx4 %s, v%d, %s, %s offen offset:%d sc1" % (A(192 + 4 * s if s < 16 else 4 * (s - 16), 4), vHp, SWS, K[4096 * (s >> 2)], 1024 * (s & 3)), tag="ph%d" % s)]
        S.at(G_(590), [W(vm="h11"), flag(sF1o), I("s_add_u32 %s, %s, 0x10000" % (sF1o, sF1o))])
        S.at(G_(630), [I(ld1, tag="f1a")])
        S.at(G_(650), [W(vm="f1a")] + self.check("f1a", vFl, ld1) + [I("s_add_u32 %s, %s, 0x10000" % (sF1p, sF1p))])
        even([hld(s) for s in range(12)], 651, 676)
        S.before(G_(708), W(vm="ph11"))
        S.at(G_(730), [W(vm="h17"), flag(sF1o)])
        S.at(G_(756), [I(ld1, tag="f1b")])
        S.at(G_(776), [W(vm="f1b")] + self.check("f1b", vFl, ld1))
        even([hld(s) for s in range(12, 18)], 777, 790)
        S.before(G_(820), W(vm="ph17"))
        xd = {0: [[W(lg="xr2")]] + self.xdma(6), 1: [[W(lg="xr4")]] + self.xdma(7) + self.xdma(8), 2: [[W(lg="xr5")]] + self.xdma("u")}
        for j in range(38): even(self.dma(j + 3) + xd.get(j, []), bar[j] + 1, bar[j + 1] - 1)
        def epiA(q):
            U = []; acc = 112 + 16 * q; T = 48 + 16 * q
            for k in range(8): U.append([I("v_mul_f32 v%d, %s, v%d" % (T + k, sL2, acc + k))])
            for k in range(8): U.append([I("v_mul_f32 v%d, v%d, v%d" % (T + 8 + k, acc + k, acc + 8 + k))])
            return U
        def epiB(st, q):
            U = []; T = 48 + 16 * q; D = 176 + 16 * st + 8 * (q >> 1) + 2 * (q & 1)
            for h in range(2):
                ks = range(4 * h, 4 * h + 4)
                for k in ks: U.append([I("v_exp_f32 v%d, v%d" % (T + k, T + k))])
                for k in ks: U.append([I("v_add_f32 v%d, 1.0, v%d" % (T + k, T + k))])
                for k in ks: U.append([I("v_rcp_f32 v%d, v%d" % (T + k, T + k))])
                for k in ks: U.append([I("v_mul_f32 v%d, v%d, v%d" % (T + 8 + k, T + 8 + k, T + k))])
                for i in range(2): U.append([I("v_cvt_pk_bf16_f32 v%d, v%d, v%d" % (D + 4 * h + i, T + 8 + 4 * h + 2 * i, T + 9 + 4 * h + 2 * i))])
                if q & 1:
                    sl = 4 * st + 2 * (q >> 1) + h
                    U.append([I("buffer_store_dwordx4 %s, v%d, %s, %s offen offset:%d sc1" % (V(176 + 4 * sl, 4), vH, SWS, K[4096 * (sl >> 2)], 1024 * (sl & 3)), tag="h%d" % sl)])
            return U
        for st in range(4):
            for q in range(4):
                e = 144 * st + 125 + 6 * q
                last = S.fill(epiA(q), G_(e) + 4, G_(e) + 15)
            if st < 3:
                U = []
                for q in range(4): U += epiB(st, q)
                S.fill(U, last + 1, G_(264) - 1 if st == 0 else G_(144 * (st + 1) + 125) + 3)
        S.fill(epiA(0), G_(635) + 4, G_(635) + 19)
        S.fill(epiA(1), G_(647) + 4, G_(647) + 23)
        l1 = S.fill(epiB(3, 0) + epiB(3, 1), last + 1, G_(self.o.get("e1", 626)))
        l2 = S.fill(epiB(3, 2) + epiB(3, 3), l1 + 1, G_(self.o.get("e2", 668)))
        l3 = S.fill(epiB(4, 0) + epiB(4, 1), l2 + 1, G_(self.o.get("e3", 704)))
        assert l2 >= G_(647) + 23
        ua, ub, uc, ud = self.fin_setup()
        ldy = "buffer_load_dword v%d, v%d, %s, 0 offen sc1" % (vFl, vFY, SWS)
        l = S.fill(ua + [[I(ldy, tag="fy")]] + ub + uc, l3 + 1, G_(742))
        S.at(G_(743), [W(vm="fy")] + self.check("fy", vFl, ldy))
        YD = 96
        even([[I("buffer_load_dwordx4 %s, v%d, %s, %s offen sc1" % (A(YD + 4 * i, 4), vYS if i == 2 else vY, SWS, K[4096] if i == 1 else "0"), tag="yl")] for i in range(3)], 744, 748)
        S.fill(ud, G_(749), G_(766))
        U = [[W(vm="yl")]]
        for k in range(5):
            U.append([I("v_mfma_f32_16x16x32_bf16 %s, %s, %s, 0" % (V(vGaS if k == 4 else vGa + 4 * k, 4), A(YD + 4 * (k >> 1), 4), V(vBhi if k & 1 else vBlo, 4)), cost=2)])
        even(U, 792, 804)
        def epi2(k, a):
            U = []; pr = 2 * k + a
            for h in range(2):
                b = ACC2[k] + 16 * a + 8 * h
                for i in range(4): U.append([I("v_cvt_pk_bf16_f32 v%d, v%d, v%d" % (b + i, b + 2 * i, b + 2 * i + 1))])
                U.append([I("buffer_store_dwordx4 %s, v%d, %s, %s offen offset:%d sc1" % (V(b, 4), vPart, SWS, K[73728 * h + 4096 * (pr >> 2)], 1024 * (pr & 3)), tag="ps%d" % k)])
            return U
        for k, a, e in ((4, 0, 827), (0, 0, 839), (0, 1, 851), (1, 0, 863), (1, 1, 875), (2, 0, 887), (2, 1, 899), (3, 0, 959)):
            S.fill(epi2(k, a), G_(e) + 6, G_(e) + 21)
        S.at(G_(910), [W(vm="ps1"), flag(sF2, 0)])
        S.at(G_(934), [W(vm="ps2"), flag(sF2, 32)])
        ld2 = lambda f: "buffer_load_dword v%d, v%d, %s, 0 offen offset:%d sc1" % (vFl, vF2, SWS, 32 * f)
        S.at(G_(928), [I(ld2(0), tag="f2a")])
        S.at(G_(946), [W(vm="f2a")] + self.check("f2a", vFl, ld2(0)))
        FD = {4: 16, 0: 32, 1: 48, 2: 64, 3: 80}
        even(self.fin_loads(4, FD[4]) + self.fin_loads(0, FD[0]) + self.fin_loads(1, FD[1]), 947, 964)
        S.at(G_(965), [I(ld2(1), tag="f2b")])
        if self.stamps:
            for s in (143, 647): S.at(G_(s) + 1, self.stamp())
        self.costs = S.cost
        p = P(); p.ext(pre); p.ext(self.stamp()); p.ext(S.items())
        p.ext(self.stamp())
        p("s_nop 5")
        for u in epi2(3, 1): p.ext(u)
        p.w(vm="f2b"); p.ext(self.check("f2b", vFl, ld2(1)))
        for u in self.fin_loads(2, FD[2]): p.ext(u)
        for n_, k in enumerate((4, 0, 1)):
            p.w(vm="fl%d" % k); p.ext(self.fin_mm(k, FD[k], 112 + 4 * n_))
        p.w(vm="ps3"); p.items.append(flag(sF2, 64))
        p.ext(self.stamp())
        for n_, k in enumerate((4, 0, 1)): p.ext(self.fin_out(k, 112 + 4 * n_))
        p.w(vm="fl2"); p.ext(self.fin_mm(2, FD[2], 124)); p.ext(self.fin_out(2, 124))
        p("s_mov_b32 %s, %d" % (sSpin, SPIN)); p.label("PP")
        p(ld2(2)); p("s_waitcnt vmcnt(0)\nv_cmp_ne_u32 vcc, v%d, v%d\ns_cbranch_vccz PP_D" % (vFl, vN))
        p("s_sub_u32 %s, %s, 1\ns_cmp_lg_u32 %s, 0\ns_cbranch_scc1 PP" % (sSpin, sSpin, sSpin)); p.label("PP_D")
        p.ext(self.stamp())
        for u in self.fin_loads(3, FD[3]): p.ext(u)
        p.w(vm="fl3"); p.ext(self.fin_mm(3, FD[3], 48)); p.ext(self.fin_out(3, 48))
        return p

    def stamp_store(self):
        p = P()
        if not self.stamps: return p
        p.ext(self.stamp("m"))
        p("s_waitcnt lgkmcnt(0)")
        p("s_lshl_b32 s55, s2, 2\ns_add_u32 s55, s55, s50\ns_lshl_b32 s55, s55, 5\ns_add_u32 s55, s55, 0x%x\nv_mov_b32 v2, s55" % STAMP)
        for k in range(self.nst):
            p("v_mov_b32 v3, s%d\nbuffer_store_dword v3, v2, %s, 0 offen offset:%d" % (84 + 2 * k, SWS, 4 * k))
        return p

    def build(self):
        p = P()
        p.ext(self.prologue()); p.ext(self.gemm()); p.ext(self.stamp_store())
        p("s_endpgm")
        items = resolve_waits(p.items)
        for sl in self.slow: items += sl.items
        items.append(I("END:"))
        items, nn = pad_hazards(items, verbose=self.o.get("v", False))
        body = render(items)
        c = self.costs
        print("instrs", len(items), "nops", nn, "pred cycles", sum(max(16, 8 + 4 * x) for x in c), "P1", sum(max(16, 8 + 4 * x) for x in c[:1296]),
              "hist", sorted({x: c.count(x) for x in set(c)}.items()))
        return body

def main(out, stamps=False, opts=None):
    import subprocess
    opts = dict(opts or {})
    for it in range(2):
        g = G(stamps, opts)
        body = g.build()
        txt = build_file([(KN, 256, 256, 163840)], [(KN, body, 512, 256)])
        open(out, "w").write(txt)
        co = assemble(out, KN)
        if not opts.get("cpf"): break
        d = subprocess.run(["llvm-objdump", "-d", co], capture_output=True, text=True).stdout
        ad = [int(m, 16) for m in re.findall(r"// ([0-9A-F]{12}):", d)]
        pc = int(re.search(r"s_getpc_b64.*// ([0-9A-F]{12}):", d).group(1), 16) + 4
        nl = (ad[-1] - pc) // 128
        if it == 1: assert opts["cpf"] <= nl + 1, (opts["cpf"], nl)
        opts["cpf"] = nl; opts["v"] = False
    return co

if __name__ == "__main__":
    main("k2_dbg.s", stamps=True, opts={"v": "-v" in sys.argv, "cpf": 480})
    main("k2_cyc.s", stamps=True, opts={"cyc": True, "cpf": 480})
    main("k2_cv.s", stamps=True, opts={"grp": "0pc", "cpf": 480})
    main("k2.s", stamps=False, opts={"cpf": 480})
```
